```python
import torch

def _softmax(x, axis=-1):
    return torch.softmax(x, dim=axis)
def _gelu(x):
    return torch.nn.functional.gelu(x, approximate="tanh")
def _silu(x):
    return torch.nn.functional.silu(x)
def _sigmoid(x):
    return torch.sigmoid(x)
def _layernorm(x, axis=-1, eps=1e-5):
    m = x.mean(dim=axis, keepdim=True)
    v = x.var(dim=axis, keepdim=True, unbiased=False)
    return (x - m) / torch.sqrt(v + eps)
def _scatter_add(tgt, idx, src, axis=0):
    return tgt.clone().index_add_(axis, idx, src)
def _segment_sum(src, seg, n):
    out = torch.zeros((n,) + src.shape[1:], dtype=src.dtype)
    return out.index_add_(0, seg, src)
def _pad(x, pw):
    flat = tuple(v for pair in reversed(pw) for v in pair)
    return torch.nn.functional.pad(x, flat)

kernel_name = 'concat_heads__mha_block_cached__gqa_block_cached__near_ridge'

def setup_inputs():

    _w = (lambda a: (lambda t: t.to(torch.bfloat16) if t.is_floating_point() else t)(torch.as_tensor(a)))
    def _A_setup():
        B, Sq, D = 16, 160, 448
        H, Sk, Dh = 16, 512, 256
        return {
            "x": _w((lambda *s: torch.randn(*s, dtype=torch.bfloat16) * 0.8)(B, Sq, D)),
            "k_cache": _w((lambda *s: torch.randn(*s, dtype=torch.bfloat16) * 0.8)(B, H, Sk, Dh)),
            "v_cache": _w((lambda *s: torch.randn(*s, dtype=torch.bfloat16) * 0.05)(B, H, Sk, Dh)),
            "wq": _w((lambda *s: torch.randn(*s, dtype=torch.bfloat16) * 0.8)(D, H * Dh) * (D ** -0.5)),
            "wo": _w((lambda *s: torch.randn(*s, dtype=torch.bfloat16) * 0.05)(H * Dh, D) * ((H * Dh) ** -0.5)),
        }
    _A_in = _A_setup()

    def _B_setup():
        B, Sq, D = 16, 160, 448
        Hq, Hkv, Sk, Dh = 16, 16, 512, 256
        assert Hq % Hkv == 0, (Hq, Hkv)
        return {
            "x": _w((lambda *s: torch.randn(*s, dtype=torch.bfloat16) * 0.8)(B, Sq, D)),
            "k_cache": _w((lambda *s: torch.randn(*s, dtype=torch.bfloat16) * 0.8)(B, Hkv, Sk, Dh)),
            "v_cache": _w((lambda *s: torch.randn(*s, dtype=torch.bfloat16) * 0.05)(B, Hkv, Sk, Dh)),
            "wq": _w((lambda *s: torch.randn(*s, dtype=torch.bfloat16) * 0.8)(D, Hq * Dh) * (D ** -0.5)),
            "wo": _w((lambda *s: torch.randn(*s, dtype=torch.bfloat16) * 0.05)(Hq * Dh, D) * ((Hq * Dh) ** -0.5)),
        }
    _B_in = _B_setup()

    return {
        "A_x": _A_in["x"],
        "A_k_cache": _A_in["k_cache"],
        "A_v_cache": _A_in["v_cache"],
        "A_wq": _A_in["wq"],
        "A_wo": _A_in["wo"],
        "B_x": _B_in["x"],
        "B_k_cache": _B_in["k_cache"],
        "B_v_cache": _B_in["v_cache"],
        "B_wq": _B_in["wq"],
        "B_wo": _B_in["wo"],
    }

def reference(A_x, A_k_cache, A_v_cache, A_wq, A_wo, B_x, B_k_cache, B_v_cache, B_wq, B_wo):
    def _A_ref(x, k_cache, v_cache, wq, wo):
        B, Sq, D = x.shape
        H, Dh = 16, 256
        q = (lambda x, *d: x.permute(*d))((x @ wq).reshape(B, Sq, H, Dh), 0, 2, 1, 3)
        scores = torch.einsum("bhqd,bhkd->bhqk", q, k_cache) * (Dh ** -0.5)
        p = _softmax(scores, axis=-1)
        o = torch.einsum("bhqk,bhkd->bhqd", p, v_cache)
        return (lambda x, *d: x.permute(*d))(o, 0, 2, 1, 3).reshape(B, Sq, H * Dh) @ wo

    def _B_ref(x, k_cache, v_cache, wq, wo):
        B, Sq, D = x.shape
        Hq, Dh = 16, 256
        Hkv = k_cache.shape[1]
        rep = Hq // Hkv
        q = (lambda x, *d: x.permute(*d))((x @ wq).reshape(B, Sq, Hq, Dh), 0, 2, 1, 3)
        k = (lambda x, n, axis: torch.repeat_interleave(x, n, dim=axis))(k_cache, rep, axis=1)
        v = (lambda x, n, axis: torch.repeat_interleave(x, n, dim=axis))(v_cache, rep, axis=1)
        scores = torch.einsum("bhqd,bhkd->bhqk", q, k) * (Dh ** -0.5)
        p = _softmax(scores, axis=-1)
        o = torch.einsum("bhqk,bhkd->bhqd", p, v)
        return (lambda x, *d: x.permute(*d))(o, 0, 2, 1, 3).reshape(B, Sq, Hq * Dh) @ wo

    a = _A_ref(A_x, A_k_cache, A_v_cache, A_wq, A_wo)
    b = _B_ref(B_x, B_k_cache, B_v_cache, B_wq, B_wo)
    return torch.concatenate([a, b], axis=-1)
```

```python
import re

def R(kind, lo, n=1):
    return [(kind, lo + i) for i in range(n)]

def rs(kind, lo, n=1):
    return f"{kind}{lo}" if n == 1 else f"{kind}[{lo}:{lo+n-1}]"

class Reg:
    def __init__(s, kind, lo, n=1): s.kind, s.lo, s.n = kind, lo, n
    def __str__(s): return rs(s.kind, s.lo, s.n)
    def regs(s): return R(s.kind, s.lo, s.n)
    def sub(s, off, n=1):
        assert off + n <= s.n, (str(s), off, n)
        return Reg(s.kind, s.lo + off, n)
    def __getitem__(s, i): return s.sub(i, 1)
def V(lo, n=1): return Reg('v', lo, n)
def A(lo, n=1): return Reg('a', lo, n)
def S(lo, n=1): return Reg('s', lo, n)
M0 = Reg('m', 0, 1)
def opstr(o):
    if isinstance(o, Reg): return "m0" if o.kind == 'm' else str(o)
    if isinstance(o, int): return str(o) if -16 <= o <= 64 else hex(o & 0xffffffff)
    return str(o)
def regs_of(ops):
    out = []
    for o in ops:
        if isinstance(o, Reg): out += o.regs()
        elif isinstance(o, Neg): out += o.r.regs()
    return out
class Neg:
    def __init__(s, r): s.r = r
    def __str__(s): return "-" + str(s.r)

TRANS = ("v_exp_f32", "v_rcp_f32", "v_log_f32", "v_rsq_f32")

class I:
    def __init__(s, text, kind, rd=(), wr=(), passes=0, tag=None, srcC=(), cost=None):
        s.text, s.kind, s.rd, s.wr, s.passes, s.tag, s.srcC = text, kind, list(rd), list(wr), passes, tag, list(srcC)
        s.cost = cost if cost is not None else (8 if kind in ('trans', 'mfma') else 4)
    def __repr__(s): return s.text

def valu(op, dst, *src, rmw=False, extra="", wr_extra=(), rd_extra=()):
    kind = 'trans' if op in TRANS else 'valu'
    rd = regs_of(src) + (dst.regs() if rmw else []) + list(rd_extra)
    return I(f"{op} {opstr(dst)}, " + ", ".join(opstr(x) for x in src) + (" " + extra if extra else ""), kind, rd, dst.regs() + list(wr_extra))
def permswap(op, a, b):
    return I(f"{op} {a}, {b}", 'perm', a.regs() + b.regs(), a.regs() + b.regs())
def salu(op, dst, *src):
    return I(f"{op} {opstr(dst)}, " + ", ".join(opstr(x) for x in src), 'salu', regs_of(src), dst.regs() if isinstance(dst, Reg) else [])
def mfma(big, d, a, b, c):
    op = "v_mfma_f32_32x32x16_bf16" if big else "v_mfma_f32_16x16x32_bf16"
    cr = c.regs() if isinstance(c, Reg) else []
    return I(f"{op} {d}, {a}, {b}, {opstr(c)}", 'mfma', a.regs() + b.regs() + cr, d.regs(), passes=8 if big else 4, srcC=cr)
def ds_read(op, dst, addr, off, tag=None):
    assert 0 <= off < 65536, off
    return I(f"{op} {dst}, {addr} offset:{off}", 'dsr', addr.regs(), dst.regs(), tag=tag)
def ds_write(op, addr, src, off, tag=None):
    assert 0 <= off < 65536, off
    return I(f"{op} {addr}, {src} offset:{off}", 'dsw', addr.regs() + src.regs(), [], tag=tag)
def dma(voff, srd, soff, off, flags, tag, width=4):
    assert 0 <= off < 4096
    op = "buffer_load_dwordx4" if width == 4 else "buffer_load_dword"
    return I(f"{op} {voff}, {srd}, {opstr(soff)} offen offset:{off} {flags} lds".replace("  ", " "), 'dma', voff.regs() + srd.regs() + regs_of([soff]) + M0.regs(), [], tag=tag)
def bload(dst, voff, srd, soff, off, flags="", tag=None):
    assert 0 <= off < 4096
    op = {1: "buffer_load_dword", 2: "buffer_load_dwordx2", 4: "buffer_load_dwordx4"}[dst.n]
    return I(f"{op} {dst}, {voff}, {srd}, {opstr(soff)} offen offset:{off} {flags}".rstrip(), 'vld', voff.regs() + srd.regs() + regs_of([soff]), dst.regs(), tag=tag)
def bstore(src, voff, srd, soff, off, flags="", tag=None):
    assert 0 <= off < 4096
    op = {1: "buffer_store_dword", 2: "buffer_store_dwordx2", 4: "buffer_store_dwordx4"}[src.n]
    return I(f"{op} {src}, {voff}, {srd}, {opstr(soff)} offen offset:{off} {flags}".rstrip(), 'vst', src.regs() + voff.regs() + srd.regs() + regs_of([soff]), [], tag=tag)
def wait_vm(tag): return I("", 'waitvm', tag=tag)
def wait_ds(tag): return I("", 'waitds', tag=tag)
def barrier(): return I("s_barrier", 'barrier')
def raw(text, kind='salu', rd=(), wr=()): return I(text, kind, rd, wr)
def label(name): return I(name + ":", 'label', cost=0)
def comment(t): return I("; " + t, 'comment', cost=0)

class Sched:
    def __init__(s):
        s.spine = []; s.budget = []; s.queues = {}
    def m(s, ins, budget=None):
        s.spine.append(ins); s.budget.append(budget if budget is not None else (20 if ins.passes == 8 else 8)); return len(s.spine) - 1
    @property
    def pos(s): return len(s.spine)
    def f(s, q, ins, lo, hi):
        if not isinstance(ins, list): ins = [ins]
        s.queues.setdefault(q, []).append((ins, lo, hi))
    def run(s, prio):
        out = []
        qs = {q: list(v) for q, v in s.queues.items()}
        for q, v in qs.items():
            h = 10**9
            for i in range(len(v) - 1, -1, -1):
                h = min(h, v[i][2]);
                assert v[i][1] <= h, (q, v[i][0], v[i][1], h)
                v[i] = (v[i][0], v[i][1], h)
        idx = {q: 0 for q in qs}
        carry = 0
        for k in range(-1, len(s.spine)):
            if k >= 0: out.append(s.spine[k])
            b = (s.budget[k] if k >= 0 else 0) + carry
            while True:
                cand = [(qs[q][idx[q]][2], prio.index(q), q) for q in qs if idx[q] < len(qs[q]) and qs[q][idx[q]][1] <= k]
                if not cand: break
                cand.sort()
                h, _, q = cand[0]
                ins = qs[q][idx[q]][0]
                c = sum(x.cost for x in ins)
                if h <= k or c <= b or (k == len(s.spine) - 1):
                    out += ins; b -= c; idx[q] += 1
                else: break
            carry = min(0, b) if False else 0
        for q in qs: assert idx[q] == len(qs[q]), q
        return out

def finalize(prog, group=2, verbose=True):
    out = []
    lds = []
    vm = []
    nwait = 0
    def emit_wait(kind, n):
        nonlocal nwait
        nwait += 1
        if out and out[-1].kind == 'wait' and kind not in out[-1].text:
            out[-1].text += f" {kind}({n})"
        else:
            out.append(I(f"s_waitcnt {kind}({n})", 'wait'))
    for pi, ins in enumerate(prog):
        touched = set(ins.rd) | set(ins.wr)
        need = -1
        if ins.kind == 'waitds':
            tags = ins.tag if isinstance(ins.tag, (list, tuple)) else [ins.tag]
            for j, o in enumerate(lds):
                if o.tag in tags or 'all' in tags: need = j
        else:
            for j, o in enumerate(lds):
                if o.kind == 'dsr' and touched & set(o.wr): need = j
                if o.kind == 'dsw' and False: pass
        if need >= 0:
            if ins.kind == 'mfma':
                need = min(need + group, max(need, len(lds) - 1 - 4))
            n = len(lds) - 1 - need
            n2 = min(n, 14)
            emit_wait("lgkmcnt", n2)
            lds = lds[len(lds) - n2:] if n2 else []
        need = -1
        if ins.kind == 'waitvm':
            tags = ins.tag if isinstance(ins.tag, (list, tuple)) else [ins.tag]
            for j, o in enumerate(vm):
                if o.tag in tags or 'all' in tags: need = j
        else:
            for j, o in enumerate(vm):
                if o.kind == 'vld' and touched & set(o.wr): need = j
        if need >= 0:
            n = len(vm) - 1 - need
            assert n <= 63
            emit_wait("vmcnt", n)
            vm = vm[len(vm) - n:] if n else []
        if ins.kind in ('waitvm', 'waitds'): continue
        if ins.kind in ('dsr', 'dsw'):
            lds.append(ins)
        if ins.kind in ('dma', 'vld', 'vst'):
            vm.append(ins)
            assert len(vm) <= 62, "too many outstanding vmem ops"
        out.append(ins)
    res = []
    nops = 0
    VALUK = ('valu', 'trans', 'perm')
    for ins in out:
        if ins.kind in ('label', 'comment'):
            res.append(ins); continue
        need = 0
        d = 0
        rd, wr = set(ins.rd), set(ins.wr)
        for p in reversed(res):
            if p.kind in ('label', 'comment'): continue
            if d >= 20: break
            pw = set(p.wr)
            req = 0
            if p.kind in VALUK:
                if ins.kind == 'mfma' and pw & rd: req = 2
                if ins.kind == 'perm' and pw & rd: req = 2
                if p.kind == 'trans' and ins.kind in ('valu', 'perm') and pw & rd: req = max(req, 1)
                if 'readfirstlane' in ins.text and pw & rd: req = max(req, 1)
                sw = {r for r in pw if r[0] == 's'}
                if sw & rd:
                    if ins.kind in ('dma', 'vld', 'vst'): req = max(req, 5)
                    elif ins.kind in VALUK: req = max(req, 2)
                if ('mixlo' in p.text or 'mixhi' in p.text) and ins.kind in VALUK and pw & (rd | wr): req = max(req, 1)
            if p.kind == 'mfma':
                full = {8: 12, 4: 8}[p.passes]
                if ins.kind == 'mfma':
                    ab = rd - set(ins.srcC) if not (set(ins.srcC) & (rd - set(ins.srcC))) else rd
                    abregs = set(ins.rd[:8])
                    if pw & abregs: req = full
                    elif pw & set(ins.srcC):
                        if not (p.wr == ins.srcC and p.passes == ins.passes): req = full - 2
                    elif pw & wr: req = full
                elif pw & (rd | wr): req = full
                if ins.kind in VALUK and set(p.srcC) & wr: req = max(req, p.passes - 1)
            if p.kind == 'salu' and ('m', 0) in pw and ins.kind == 'dma': req = 1
            if p.kind == 'vst' and len(p.rd) and wr:
                data = set(r for r in p.rd[:4] if r[0] in 'va')
                if 'x4' in p.text and data & wr: req = max(req, 2)
            need = max(need, req - d)
            if p.text.startswith("s_nop"): d += int(p.text.split()[1]) + 1
            else: d += 1
        while need > 0:
            n = min(need, 16)
            res.append(I(f"s_nop {n-1}", 'nop')); nops += n; need -= n
        res.append(ins)
    if verbose:
        from collections import Counter
        c = Counter(i.kind for i in res)
        print("instr counts:", dict(c), "nop states:", nops)
    return res
```

```python
import sys, math
from asmlib import *
NAME = "concat_heads__mha_block_cached__gqa_block_cached__near_ridge"

class P:
    kvflags = "nt"; wflags = ""; xflags = ""; oflags = ""; woflags = ""
    DW = 2
    DKV = 7
    R = 6
    stamps = False
    kmin = [[4, 6, 8], [0, 4, 8]]
    bq, bk, bks, bv = 20, 24, 8, 24
    k2depth = 4
    k2oflags = ""; k2wflags = ""
    group = 2

SLOT = 16640
XBUF = [116480, 136960]
MISC = 157440
P4BUF = [MISC, MISC + 2048]
XCH_MAX = MISC + 4096
XCH_SUM = MISC + 5120
WS_WOT = 41943040
WS_STAMP = 50331648
CSCALE = math.log2(math.e) / 16.0
import struct
def f2u(x): return struct.unpack("<I", struct.pack("<f", x))[0]

sX, sWQ, sK, sV, sO, sWO, sWT = S(8, 4), S(12, 4), S(16, 4), S(20, 4), S(24, 4), S(28, 4), S(32, 4)
sW, sC = S(36), S(37)
sM0V, sM0K, sM0X = S(38), S(39), S(40)
sKV = S(41)
sWQo = S(42)
sXo = S(43)
sDT = [S(44), S(45), S(46), S(47)]; sDTS = S(48)
sT = [S(49), S(50), S(51), S(52), S(53), S(54)]
sSo = S(55)
sD = S(56)
sBr, sB, sJ, sG = S(57), S(58), S(59), S(3)
STAMP0 = 64
vL = V(1)
vAV = [V(2), V(3), V(4), V(5)]
vAK = [V(6), V(7), V(8), V(9)]; vAKS = V(10)
vAXO = [V(11), V(12), V(13), V(14)]; vAXS = [V(15), V(16), V(17), V(18)]
vDK, vDV, vDW, vDX = V(19), [V(20), V(21)], [V(22), V(23)], V(24)
vOo = V(25)
vQ4w, vQ4r = V(26), V(27)
vP4w, vP4r = V(28), V(29)
vXw, vXrM, vXrS = V(30), V(31), V(32)
vMx, vMx4, vNm, vNm4 = V(33), V(34), V(35), V(36)
vCor, vDel = V(37), V(38)
vLs, vL4 = V(39), V(40)
vInv, vInv4 = V(41), V(42)
vWoA = V(43)
vT = [V(44 + i) for i in range(12)]
vS = [V(56, 16), V(72, 16)]; vS4 = [V(88, 4), V(92, 4)]
vP = [V(56 + 4 * i, 4) for i in range(4)]
def vE(t): return V(96 + 8 * t, 8)
def vE4(t): return V(224 + 2 * t, 2)
def vQA(j): return V(96 + 16 * j, 16)
def aO(j): return A(16 * j, 16)
def aQ(j, i2): return A(8 * j + 4 * i2, 4)
def aQ4(s): return A(64 + 4 * s, 4)
NF = 12
def aF(i): return A(160 + 4 * (i % NF), 4)
def aP4(t, m): return A(208 + 8 * (t & 1) + 4 * m, 4)
def aXO(s): return A(224 + 4 * s, 4)
def aXS(s): return A(240 + 4 * s, 4)
def aRef(t): return A(224 + t)
def aRef4(t): return A(240 + t)

def common_ids(L):
    L += [raw("s_load_dwordx16 s[64:79], s[0:1], 0"), raw("s_load_dwordx8 s[80:87], s[0:1], 64"), raw("s_load_dwordx2 s[88:89], s[0:1], 96")]
    L += [salu("s_and_b32", sT[0], S(2), 7), salu("s_lshr_b32", sT[1], S(2), 3),
          salu("s_and_b32", sJ, sT[1], 7), salu("s_lshr_b32", sT[2], sT[1], 3),
          salu("s_lshr_b32", sBr, sT[0], 2), salu("s_and_b32", sT[3], sT[0], 3),
          salu("s_lshl_b32", sB, sT[3], 2), salu("s_add_u32", sB, sB, sT[2]),
          salu("s_lshl_b32", sG, sBr, 4), salu("s_add_u32", sG, sG, sB),
          salu("s_lshl_b32", sT[4], sT[3], 5), salu("s_add_u32", sT[4], sT[4], sT[1]),
          valu("v_lshrrev_b32", vT[0], 6, V(0)), valu("v_and_b32", vL, 63, V(0)),
          I(f"v_readfirstlane_b32 {sW}, {vT[0]}", 'valu', vT[0].regs(), sW.regs()),
          raw("s_waitcnt lgkmcnt(0)", 'wait'),
          raw(f"s_cmp_eq_u32 {sBr}, 0")]
def srd(L, r, lo, hi, addlo, addhi, nrec):
    L += [salu("s_add_u32", r[0], lo, addlo), salu("s_addc_u32", r[1], hi, addhi),
          salu("s_mov_b32", r[2], nrec), salu("s_mov_b32", r[3], 0x20000)]

def plan_dma():
    occ = {s: [] for s in range(9)}
    plan = {}
    def free(s, a, b): return all(b <= x or a >= y for x, y in occ[s])
    def res(s, a, b):
        assert free(s, a, b), (s, a, b, occ[s]); occ[s].append((a, b))
    pool = P.DW + 2
    q4 = {}
    res(5, -1, 4); res(6, -1, 4)
    for b in range(2):
        q0 = 46 * b
        res(7, max(q0 - 3, -1), q0 + 13); res(8, max(q0 - 3, -1), q0 + 13)
    last = -1
    for b in range(2):
        q0 = 46 * b
        ws = []
        for i in range(14):
            iss = q0 + i - P.DW
            if b == 0 and i < pool: iss = -1
            if i < pool:
                c = [s for s in range(9) if free(s, iss, q0 + 16) and s not in ws]
                ws.append(min(c, key=lambda s: max([y for x, y in occ[s]] + [-9])))
            res(ws[i % pool], iss, q0 + i + 2); plan[('W', b, i)] = (iss, ws[i % pool] * SLOT)
        for c in range(7):
            iss = max(q0 + 2 * c - 3, -1)
            plan[('X', b, c)] = (iss, XBUF[c & 1])
        s = ws[10 % pool]
        res(s, q0 + 13, q0 + 16); q4[b] = s * SLOT
        for kind, base in (('K', 14), ('V', 30)):
            for t in range(16):
                n = 46 * b + base + t
                lo = max(last, n - P.DKV) if not (kind == 'K' and t < len(P.kmin[b])) else max(last, 46 * b + P.kmin[b][t])
                best = None
                for iss in range(lo, n):
                    c = [s for s in range(9) if free(s, iss, n + 2)]
                    if c: best = (iss, min(c, key=lambda s: min([x for x, y in occ[s] if x >= n + 2] + [999]))); break
                assert best, (kind, b, t)
                res(best[1], best[0], n + 2); plan[(kind, b, t)] = (best[0], best[1] * SLOT); last = best[0]
    return plan, q4

def dma_groups(item, addr):
    kind, b, t = item
    G = []
    tag = item
    if kind == 'K':
        for j in range(4):
            g = [salu("s_add_u32", M0, sM0K, addr + j * 528)]
            g.append(salu("s_add_u32", sD, sKV, b * 8 * 262144 + t * 16384) if j == 0 else raw("s_nop 0", 'nop'))
            g.append(dma(vDK, sK, sD, j * 512, P.kvflags, tag)); G.append(g)
    elif kind == 'V':
        for j in range(4):
            g = []
            if j == 0: g = [salu("s_add_u32", M0, sM0V, addr), salu("s_add_u32", sD, sKV, b * 8 * 262144 + t * 16384)]
            g.append(dma(vDV[j & 1], sV, sD, j * 1024, P.kvflags, tag)); G.append(g)
    elif kind == 'W':
        for j in range(4):
            g = []
            if j == 0: g = [salu("s_add_u32", M0, sM0V, addr)]
            g.append(salu("s_add_u32", sD, sWQo, b * 8 * 512 + t * 32 * 8192 + j * (16384 - 1024)))
            g.append(dma(vDW[j & 1], sWQ, sD, j * 1024, P.wflags, tag)); G.append(g)
    elif kind == 'X':
        for j in range(5):
            G.append([salu("s_add_u32", M0, sM0X, addr + j * 4096), salu("s_add_u32", sD, sXo, t * 128 + j * 4 * 7168),
                      dma(vDX, sX, sD, 0, P.xflags, tag)])
    return G

nstamp = [0]
def stamp():
    if not P.stamps: return []
    k = nstamp[0]; nstamp[0] += 1
    assert STAMP0 + 2 * k + 1 < 96
    return [raw(f"s_memtime s[{STAMP0+2*k}:{STAMP0+2*k+1}]")]

def gen_k1():
    nstamp[0] = 0
    L = []
    L += [raw("s_cmp_ge_u32 s2, 256"), raw("s_cbranch_scc1 L_k1_end")]
    if P.stamps: L += [raw("s_memrealtime s[96:97]"), raw("s_memtime s[98:99]")]
    common_ids(L)
    for k in range(5):
        L.append(raw(f"s_cselect_b64 s[{64+2*k}:{65+2*k}], s[{64+2*k}:{65+2*k}], s[{74+2*k}:{75+2*k}]"))
    L += [salu("s_mul_i32", sT[0], sB, 143360)]; srd(L, sX, S(64), S(65), sT[0], 0, 143360)
    L += [salu("s_lshl_b32", sT[0], sB, 22)]; srd(L, sK, S(66), S(67), sT[0], 0, 1 << 22); srd(L, sV, S(68), S(69), sT[0], 0, 1 << 22)
    srd(L, sWQ, S(70), S(71), 0, 0, 448 * 8192)
    L += [salu("s_mul_i32", sT[0], sT[4], 32 * 896)]; srd(L, sWO, S(72), S(73), sT[0], 0, 32 * 896)
    L += [salu("s_mul_i32", sT[0], sG, 1310720)]; srd(L, sO, S(88), S(89), sT[0], 0, 1310720)
    L += [salu("s_lshl_b32", sT[0], sBr, 7), salu("s_add_u32", sT[0], sT[0], sT[4]), salu("s_mul_i32", sT[0], sT[0], 28672),
          salu("s_add_u32", sT[0], sT[0], WS_WOT)]; srd(L, sWT, S(88), S(89), sT[0], 0, 28672)
    if P.stamps: L += [salu("s_mov_b64", S(100, 2), S(88, 2))]
    L += [salu("s_mov_b32", sC, f2u(CSCALE)), salu("s_lshl_b32", sM0V, sW, 12), salu("s_mul_i32", sM0K, sW, 4160),
          salu("s_lshl_b32", sM0X, sW, 10), salu("s_lshl_b32", sKV, sJ, 18), salu("s_lshl_b32", sWQo, sJ, 9), salu("s_mul_i32", sXo, sW, 7168)]
    t0, t1, t2, t3, t4, t5 = vT[:6]
    L += [valu("v_lshrrev_b32", t0, 5, vL), valu("v_and_b32", t1, 31, vL), salu("s_lshl_b32", sT[0], sW, 3),
          valu("v_add_u32", t2, sT[0], t0)]
    for par in range(2):
        L += [valu("v_add_u32", t3, 2 * par, t0), valu("v_lshlrev_b32", t3, 2, t3), valu("v_xor_b32", t3, t3, t1), valu("v_lshlrev_b32", t3, 4, t3),
              valu("v_lshl_add_u32", vDV[par], t2, 9, t3), valu("v_lshl_add_u32", vDW[par], t2, 13, t3)]
    L += [salu("s_lshl_b32", sT[0], sW, 11), valu("v_lshlrev_b32", t3, 13, t0), valu("v_lshl_add_u32", t3, t1, 4, t3), valu("v_add_u32", vDK, sT[0], t3)]
    L += [salu("s_and_b32", sT[0], sW, 1), salu("s_lshl_b32", sT[0], sT[0], 2), valu("v_lshrrev_b32", t3, 4, vL), valu("v_add_u32", t3, sT[0], t3),
          valu("v_and_b32", t4, 7, vL), valu("v_xor_b32", t3, t3, t4), valu("v_lshlrev_b32", t3, 4, t3),
          valu("v_lshrrev_b32", t4, 3, vL), valu("v_mul_u32_u24", t4, 896, t4), valu("v_add_u32", vDX, t3, t4)]
    plan, q4 = plan_dma()
    order = []
    for b in range(2):
        for i in range(14):
            if i % 2 == 0: order.append(('X', b, i // 2))
            order.append(('W', b, i))
        order += [('K', b, t) for t in range(16)] + [('V', b, t) for t in range(16)]
    need = lambda it: 46 * it[1] + {'W': it[2], 'X': 2 * it[2], 'K': 14 + it[2], 'V': 30 + it[2]}[it[0]]
    byint = {}
    for it in sorted(order, key=lambda it: (plan[it][0], need(it))): byint.setdefault(plan[it][0], []).append(it)
    if 1: print("dma plan:", {k: [(i[0] + str(i[2]), plan[i][1] // SLOT) for i in v] for k, v in byint.items()})
    for it in byint.get(-1, []):
        for g in dma_groups(it, plan[it][1]): L += g
    WOL = 5 * SLOT
    L += [salu("s_mul_i32", sT[0], sW, 224), salu("s_mov_b32", sT[1], 4682)]
    for p in range(7):
        L += [valu("v_add_u32", t0, 64 * p, vL), valu("v_mul_u32_u24", t1, sT[1], t0), valu("v_lshrrev_b32", t1, 16, t1),
              valu("v_mul_u32_u24", t2, 14, t1), valu("v_sub_u32", t2, t0, t2),
              valu("v_and_b32", t3, 0x13, t1), valu("v_and_b32", t4, 4, t1), valu("v_lshl_add_u32", t3, t4, 1, t3),
              valu("v_and_b32", t4, 8, t1), valu("v_lshrrev_b32", t4, 1, t4), valu("v_add_u32", t3, t3, t4),
              valu("v_mul_u32_u24", t3, 896, t3), valu("v_lshl_add_u32", t3, t2, 4, t3),
              salu("s_add_u32", M0, sXo, WOL + p * 1024), raw("s_nop 0", 'nop'), dma(t3, sWO, sT[0], 0, P.woflags, 'WO')]
    q, hi, r, c, g4, l16 = vT[6:12]
    L += [valu("v_and_b32", q, 31, vL), valu("v_lshrrev_b32", hi, 5, vL), valu("v_bfe_u32", r, vL, 2, 2), valu("v_and_b32", c, 3, vL),
          valu("v_lshrrev_b32", g4, 4, vL), valu("v_and_b32", l16, 15, vL)]
    L += [valu("v_lshl_add_u32", t0, hi, 3, r), valu("v_lshlrev_b32", t0, 9, t0), valu("v_and_b32", t1, 1, g4), valu("v_lshl_add_u32", t0, t1, 5, t0),
          valu("v_and_b32", t1, 1, c), valu("v_lshl_add_u32", t0, t1, 4, t0), valu("v_lshrrev_b32", t1, 1, c), valu("v_lshl_add_u32", t0, t1, 3, t0),
          valu("v_xor_b32", t1, sW, r)]
    for jj in range(4): L += [valu("v_xor_b32", t2, jj, t1), valu("v_lshl_add_u32", vAV[jj], t2, 6, t0)]
    L += [valu("v_and_b32", t0, 3, q), valu("v_and_b32", t1, 4, q), valu("v_lshl_add_u32", t0, t1, 1, t0), valu("v_and_b32", t1, 8, q),
          valu("v_lshrrev_b32", t1, 1, t1), valu("v_add_u32", t0, t0, t1), valu("v_mul_u32_u24", t0, 1040, t0),
          valu("v_lshrrev_b32", t1, 4, q), valu("v_lshl_add_u32", t0, t1, 9, t0), valu("v_lshl_add_u32", t0, hi, 4, t0)]
    for jj in range(4): L += [salu("s_xor_b32", sT[0], sW, jj), salu("s_lshl_b32", sT[0], sT[0], 6), valu("v_add_u32", vAK[jj], sT[0], t0)]
    L += [salu("s_and_b32", sT[1], sW, 1), salu("s_lshr_b32", sT[2], sW, 1),
          salu("s_lshl_b32", sT[0], sT[1], 9), valu("v_mul_u32_u24", t0, 1040, l16), valu("v_and_b32", t1, 1, g4), valu("v_lshl_add_u32", t0, t1, 8, t0),
          valu("v_lshl_add_u32", t0, hi, 4, t0), valu("v_add_u32", vAKS, sT[0], t0)]
    L += [valu("v_bfe_u32", t0, q, 1, 3), valu("v_xor_b32", t0, t0, hi), valu("v_lshlrev_b32", t1, 7, q), salu("s_add_u32", sT[0], sM0V, XBUF[0])]
    for s in range(4):
        L += [valu("v_xor_b32", t2, 2 * s, t0), valu("v_lshl_add_u32", t2, t2, 4, t1), valu("v_add_u32", vAXO[s], sT[0], t2), valu("v_add_u32", vAXS[s], XBUF[0] + 4 * 4096, t2)]
    L += [valu("v_lshrrev_b32", t0, 4, q), valu("v_lshlrev_b32", t1, 4, l16), valu("v_lshl_add_u32", t2, t0, 10, t1), valu("v_lshl_add_u32", t2, hi, 8, t2),
          salu("s_lshl_b32", sT[0], sW, 11), valu("v_add_u32", vOo, sT[0], t2)]
    L += [valu("v_lshl_add_u32", t2, t0, 13, t1), valu("v_lshl_add_u32", t2, hi, 9, t2), salu("s_add_u32", sT[0], sT[0], q4[0]), valu("v_add_u32", vQ4w, sT[0], t2),
          salu("s_lshl_b32", sT[0], sT[2], 13), salu("s_add_u32", sT[0], sT[0], q4[0]), valu("v_lshlrev_b32", t2, 4, vL), valu("v_add_u32", vQ4r, sT[0], t2),
          valu("v_add_u32", vP4r, MISC, t2)]
    L += [salu("s_lshl_b32", sT[0], sT[1], 10), salu("s_lshl_b32", sT[3], sT[2], 8), salu("s_add_u32", sT[0], sT[0], sT[3]), salu("s_add_u32", sT[0], sT[0], MISC),
          valu("v_lshl_add_u32", t2, hi, 9, t1), valu("v_and_b32", t3, 1, g4), valu("v_lshl_add_u32", t2, t3, 3, t2), valu("v_add_u32", vP4w, sT[0], t2)]
    L += [salu("s_lshl_b32", sT[0], sT[2], 9), salu("s_add_u32", sT[0], sT[0], MISC), valu("v_lshlrev_b32", t2, 5, l16), valu("v_add_u32", vXrM, sT[0], t2),
          salu("s_lshl_b32", sT[0], sT[1], 4), valu("v_lshl_add_u32", t2, g4, 2, vXrM), valu("v_add_u32", vXw, sT[0], t2),
          valu("v_lshlrev_b32", t2, 5, q), valu("v_add_u32", vXrS, MISC, t2)]
    L += [valu("v_lshl_add_u32", t2, hi, 4, r), valu("v_lshl_add_u32", t2, t3, 2, t2), valu("v_mul_u32_u24", t2, 224, t2), valu("v_lshl_add_u32", t2, c, 3, t2),
          salu("s_add_u32", sT[0], sXo, WOL), valu("v_add_u32", vWoA, sT[0], t2)]
    for jj in range(4):
        L += [salu("s_xor_b32", sT[0], sW, jj), salu("s_lshl_b32", sT[3], sJ, 3), salu("s_add_u32", sT[0], sT[0], sT[3]), salu("s_mul_i32", sDT[jj], sT[0], 10240)]
    L += [salu("s_lshl_b32", sT[0], sW, 11), salu("s_sub_u32", sDTS, sDT[0], sT[0]), salu("s_add_u32", sDTS, sDTS, 8192)]

    sc = Sched()
    frags = []
    p0 = {}; pend = {}
    info = {}
    def addfrag(step, spec):
        frags.append(dict(step=step, spec=spec, first=sc.pos, last=sc.pos)); return len(frags) - 1
    for b in range(2):
        q0 = 46 * b
        for i in range(14):
            n = q0 + i; p0[n] = sc.pos
            for m in range(2):
                s = 2 * (i & 1) + m
                js = [0, 4, 1, 2, 3, 5, 6, 7] if (i == 13 and m == 1) else range(8)
                for j in js:
                    f = addfrag(n, ('V', m, j))
                    first = (i == 0 and m == 0)
                    if j in (0, 4) and i == 13 and m == 1:
                        info[('qs', b, j)] = sc.m(mfma(True, vQA(8 + j // 4), aF(f), aXS(s), vQA(8 + j // 4)), P.bq)
                    info[('qo', b, j)] = sc.m(mfma(True, vQA(j), aF(f), aXO(s), 0 if first else vQA(j)), P.bq)
                    if j in (0, 4) and not (i == 13 and m == 1):
                        sc.m(mfma(True, vQA(8 + j // 4), aF(f), aXS(s), 0 if first else vQA(8 + j // 4)), P.bq)
                    frags[f]['last'] = sc.pos - 1
            pend[n] = sc.pos - 1
        for t in range(16):
            n = q0 + 14 + t; p0[n] = sc.pos
            own = [(j, i2) for j in ([0, 4, 1, 2, 3, 5, 6, 7] if t == 0 else range(8)) for i2 in range(2)]
            if t == 0: seq = [('o', x) for x in own] + [('s', s) for s in range(8)]
            elif t == 15: seq = [('s', s) for s in range(8)] + [('o', x) for x in own]
            else:
                seq = []
                for s in range(8): seq += [('o', own[2 * s]), ('o', own[2 * s + 1]), ('s', s)]
            fo = fs = True
            for k, x in seq:
                f = addfrag(n, ('K', k, x))
                if k == 'o':
                    pp = sc.m(mfma(True, vS[t & 1], aF(f), aQ(*x), 0 if fo else vS[t & 1]), P.bk)
                    if fo: info[('kof', b, t)] = pp
                    fo = False; info[('kol', b, t)] = pp
                    if t == 0 and x[1] == 0: info[('kq', b, x[0])] = pp
                else:
                    pp = sc.m(mfma(False, vS4[t & 1], aF(f), aQ4(x), 0 if fs else vS4[t & 1]), P.bks)
                    if fs: info[('ksf', b, t)] = pp
                    fs = False; info[('ksl', b, t)] = pp
            pend[n] = sc.pos - 1
        for t in range(16):
            n = q0 + 30 + t; p0[n] = sc.pos
            for m in range(2):
                info[('vf', b, t, m)] = sc.pos
                Bo = vE(15).sub(4 * m, 4) if t == 15 else vP[(2 * t + m) % 4]
                for j in range(8):
                    f = addfrag(n, ('V', m, j))
                    first = (t == 0 and m == 0)
                    info[('vo', b, j)] = sc.m(mfma(True, aO(j), aF(f), Bo, 0 if first else aO(j)), P.bv)
                    if j in (0, 4): info[('vo', b, 8 + j // 4)] = sc.m(mfma(True, aO(8 + j // 4), aF(f), aP4(t, m), 0 if first else aO(8 + j // 4)), P.bv)
                    frags[f]['last'] = sc.pos - 1
            pend[n] = sc.pos - 1
    END = sc.pos - 1
    def tile_of(n):
        b, r_ = divmod(n, 46)
        return ('W', b, r_) if r_ < 14 else (('K', b, r_ - 14) if r_ < 30 else ('V', b, r_ - 30))
    base = {'V': 0, 'K': 0}
    bgap = {}
    extra = {}
    prev = None
    items = []
    for fi, fr in enumerate(frags):
        gap = -1 if fi < P.R else frags[fi - P.R]['first']
        if fi >= NF: assert frags[fi - NF]['last'] <= gap
        n = fr['step']; b, rn = divmod(n, 46)
        it = tile_of(n); addr = plan[it][1]
        cls = 'K' if it[0] == 'K' else 'V'
        if n != prev:
            prev = n; bgap[n] = gap
            tags = [it] + ([('X', b, rn // 2)] if rn < 14 and rn % 2 == 0 else [])
            pre = [wait_vm(tags), wait_ds('pub')]
            if rn in (0, 14, 30): pre += stamp()
            items.append((gap, pre + [barrier()]))
            lim = 55039 if cls == 'V' else 65055
            if not (0 <= addr - base[cls] <= lim):
                ups = [plan[tile_of(x)][1] for x in range(n, 92) if (tile_of(x)[0] == 'K') == (cls == 'K')]
                def cover(bs):
                    k = 0
                    for u in ups:
                        if 0 <= u - bs <= lim: k += 1
                        else: break
                    return k
                nb = max([addr - k * SLOT for k in range(4) if addr - k * SLOT >= 0], key=cover)
                for rg in (vAV if cls == 'V' else vAK + [vAKS]): items.append((gap, [valu("v_add_u32", rg, nb - base[cls], rg)]))
                base[cls] = nb
            if rn < 14 and rn % 2 == 0:
                xo = XBUF[(rn // 2) & 1] - XBUF[0]
                for s in (0, 1):
                    items.append((gap, [ds_read("ds_read_b128", aXO(s), vAXO[s], xo, tag="pub")])); items.append((gap, [ds_read("ds_read_b128", aXS(s), vAXS[s], xo, tag="pub")]))
                for k, s in enumerate((2, 3)):
                    extra.setdefault(p0[n] + 2 * k, []).append([ds_read("ds_read_b128", aXO(s), vAXO[s], xo, tag="pub")])
                    extra.setdefault(p0[n] + 2 * k + 1, []).append([ds_read("ds_read_b128", aXS(s), vAXS[s], xo, tag="pub")])
            if rn >= 30:
                t = rn - 30
                for m in range(2): items.append((gap, [ds_read("ds_read_b128", aP4(t, m), vP4r, (t & 1) * 2048 + m * 1024, tag="pub")]))
        d = aF(fi); o = addr - base[cls]
        sp = fr['spec']
        if sp[0] == 'V':
            _, m, j = sp
            for r2 in range(2): items.append((gap, [ds_read("ds_read_b64_tr_b16", d.sub(2 * r2, 2), vAV[j & 3], o + m * 8192 + r2 * 2048 + (j & 4) * 64)]))
        elif sp[1] == 'o':
            j, i2 = sp[2]; items.append((gap, [ds_read("ds_read_b128", d, vAK[j & 3], o + (j & 4) * 64 + i2 * 32)]))
        else:
            items.append((gap, [ds_read("ds_read_b128", d, vAKS, o + sp[2] * 32)]))
    bgap[92] = END
    def vq(q, ins, lo, hi):
        for x in ins: sc.f(q, x, lo, hi)
    for b in range(2):
        q0 = 46 * b
        lo = info[('qs', b, 4)] + 2
        xg = p0[q0 + 14] + 3
        if b == 1 and q4[1] != q4[0]: vq('valu', [valu('v_add_u32', vQ4w, q4[1] - q4[0], vQ4w), valu('v_add_u32', vQ4r, q4[1] - q4[0], vQ4r)], lo - 10, xg - 3)
        for k in range(2):
            for i2 in range(2):
                tmp = V(44 + 4 * i2, 4)
                vq('valu', [valu("v_cvt_pk_bf16_f32", tmp[e], vQA(8 + k)[8 * i2 + 2 * e], vQA(8 + k)[8 * i2 + 2 * e + 1]) for e in range(4)], lo, xg - 3)
                vq('valu', [ds_write("ds_write_b128", vQ4w, tmp, i2 * 1024 + k * 256, tag='pub')], lo, xg - 3)
        extra.setdefault(xg, []).append([wait_ds('pub'), barrier()])
        for s in range(8): extra.setdefault(xg + 1 + s // 2, []).append([ds_read("ds_read_b128", aQ4(s), vQ4r, s * 1024)])
        for j in [0, 4, 1, 2, 3, 5, 6, 7]:
            ins = []
            for e in range(8):
                ins.append(valu("v_cvt_pk_bf16_f32", vT[8 + (e & 3)], vQA(j)[2 * e], vQA(j)[2 * e + 1]))
                if e >= 1: ins.append(valu("v_accvgpr_write_b32", A(8 * j + e - 1), vT[8 + ((e - 1) & 3)]))
            ins.append(valu("v_accvgpr_write_b32", A(8 * j + 7), vT[8 + 3]))
            vq('valu2', ins, min(info[('qo', b, j)] + 2, info[('kq', b, j)] - 1), info[('kq', b, j)] - 1)
        def maxes(acc, src, n, first):
            ins = []
            if first: ins.append(valu("v_max_f32", acc, src[0], src[1]))
            for e in range(1 if first else 0, n // 2): ins.append(valu("v_max3_f32", acc, acc, src[2 * e], src[2 * e + 1]))
            return ins
        for t in range(15):
            Sx = vS[t & 1]; S4 = vS4[t & 1]
            lo4 = info[('ksl', b, t)] + 2; hi4 = info[('ksf', b, t + 2)] - 1 if t < 14 else info[('ksl', b, 15)]
            ins = maxes(vMx4, S4, 4, t == 0) + [valu("v_mul_f32", vNm4, Neg(sC) if False else sC, Neg(vMx4), extra=""), valu("v_accvgpr_write_b32", aRef4(t), vNm4)]
            ins[-2] = I(f"v_mul_f32_e64 {vNm4}, {sC}, -{vMx4}", 'valu', sC.regs() + vMx4.regs(), vNm4.regs())
            for op, e in (("v_fma_mixlo_f16", 0), ("v_fma_mixlo_f16", 2), ("v_fma_mixhi_f16", 1), ("v_fma_mixhi_f16", 3)):
                ins.append(valu(op, vE4(t)[e // 2], S4[e], sC, vNm4, rmw=True))
            vq('valu4', ins, lo4, hi4)
            lo = info[('kol', b, t)] + 2; hi_ = info[('kof', b, t + 2)] - 1 if t < 14 else info[('kol', b, 15)]
            ins = maxes(vMx, Sx, 16, t == 0) + [I(f"v_mul_f32_e64 {vNm}, {sC}, -{vMx}", 'valu', sC.regs() + vMx.regs(), vNm.regs()), valu("v_accvgpr_write_b32", aRef(t), vNm)]
            for e in range(8):
                ins += [valu("v_fma_f32", Sx[2 * e], Sx[2 * e], sC, vNm), valu("v_fma_f32", Sx[2 * e + 1], Sx[2 * e + 1], sC, vNm),
                        valu("v_exp_f32", Sx[2 * e], Sx[2 * e]), valu("v_exp_f32", Sx[2 * e + 1], Sx[2 * e + 1])]
                if e: ins.append(valu("v_cvt_pk_f16_f32", vE(t)[e - 1], Sx[2 * e - 2], Sx[2 * e - 1]))
            ins.append(valu("v_cvt_pk_f16_f32", vE(t)[7], Sx[14], Sx[15]))
            vq('valu', ins, lo, hi_)
        nV = q0 + 30
        lo = info[('ksl', b, 15)] + 2
        x1 = lo + 3
        assert x1 + 4 < bgap[nV], (x1, bgap[nV])
        vq('valu4', maxes(vMx4, vS4[1], 4, False) + [ds_write("ds_write_b32", vXw, vMx4, XCH_MAX - MISC, tag='pub')], lo, x1 - 1)
        tA, tB = V(44, 4), V(48, 4)
        extra.setdefault(x1, []).append([wait_ds('pub'), barrier(), ds_read("ds_read_b128", tA, vXrM, XCH_MAX - MISC), ds_read("ds_read_b128", tB, vXrM, XCH_MAX - MISC + 16)])
        ins = [valu("v_max3_f32", vMx4, tA[0], tA[1], tA[2]), valu("v_max3_f32", vMx4, vMx4, tA[3], tB[0]), valu("v_max3_f32", vMx4, vMx4, tB[1], tB[2]),
               valu("v_max_f32", vMx4, vMx4, tB[3]), I(f"v_mul_f32_e64 {vNm4}, {sC}, -{vMx4}", 'valu', sC.regs() + vMx4.regs(), vNm4.regs())]
        vq('valu4', ins, x1 + 2, bgap[nV] - 1)
        u = [V(52), V(53), V(54), V(55)]
        def p4(t, lo, hi):
            if t < 15:
                ins = [valu("v_accvgpr_read_b32", vDel, aRef4(t)), valu("v_sub_f32", vDel, vNm4, vDel)]
                for e in range(4): ins.append(valu("v_fma_mix_f32", u[e], vE4(t)[e // 2], "1.0", vDel, extra=f"op_sel:[{e&1},0,0] op_sel_hi:[1,0,0]"))
            else:
                ins = [valu("v_fma_f32", u[e], vS4[1][e], sC, vNm4) for e in range(4)]
            ins += [valu("v_exp_f32", u[e], u[e]) for e in range(4)]
            if t == 0: ins += [valu("v_add_f32", vL4, u[0], u[1])]
            else: ins += [valu("v_add_f32", vL4, vL4, u[0]), valu("v_add_f32", vL4, vL4, u[1])]
            ins += [valu("v_cvt_pk_bf16_f32", u[0], u[0], u[1]), valu("v_add_f32", vL4, vL4, u[2]), valu("v_add_f32", vL4, vL4, u[3]),
                    valu("v_cvt_pk_bf16_f32", u[1], u[2], u[3]), ds_write("ds_write_b64", vP4w, V(52, 2), (t & 1) * 2048, tag='pub')]
            vq('valu4', ins, lo, hi)
        p4(0, x1 + 2, bgap[nV] - 1)
        for t in range(1, 16): p4(t, bgap[nV + t - 1] + 1, bgap[nV + t] - 3)
        vq('valu4', [ds_write("ds_write_b32", vXw, vL4, XCH_SUM - MISC, tag='pub')], bgap[nV + 14] + 1, bgap[nV + 15] - 1)
        tA, tB = V(88, 4), V(92, 4)
        extra.setdefault(bgap[nV + 15] + 1, []).append([ds_read("ds_read_b128", tA, vXrS, XCH_SUM - MISC), ds_read("ds_read_b128", tB, vXrS, XCH_SUM - MISC + 16)])
        ins = [valu("v_add_f32", tA[0], tA[0], tA[1]), valu("v_add_f32", tA[2], tA[2], tA[3]), valu("v_add_f32", tB[0], tB[0], tB[1]), valu("v_add_f32", tB[2], tB[2], tB[3]),
               valu("v_add_f32", tA[0], tA[0], tA[2]), valu("v_add_f32", tB[0], tB[0], tB[2]), valu("v_add_f32", tA[0], tA[0], tB[0]), valu("v_rcp_f32", vInv4, tA[0])]
        vq('valu4', ins, bgap[nV + 15] + 4, pend[nV + 15])
        g = info[('kol', b, 15)]
        ins = maxes(vMx, vS[1], 16, False) + [valu("v_mov_b32", vNm, vMx), permswap("v_permlane32_swap_b32", vNm, vMx), valu("v_max_f32", vMx, vMx, vNm),
                                               I(f"v_mul_f32_e64 {vNm}, {sC}, -{vMx}", 'valu', sC.regs() + vMx.regs(), vNm.regs())]
        vq('valu', ins, g, g)
        w_ = [V(44), V(45), V(46), V(47)]
        for t in range(15):
            for m in range(2):
                ins = []
                if m == 0: ins = [valu("v_accvgpr_read_b32", vCor, aRef(t)), valu("v_sub_f32", vCor, vNm, vCor), valu("v_exp_f32", vCor, vCor)]
                dst = vP[(2 * t + m) % 4]
                for e in range(4):
                    a_, b_ = w_[2 * (e & 1)], w_[2 * (e & 1) + 1]
                    ins += [valu("v_fma_mix_f32", a_, vE(t)[4 * m + e], vCor, 0, extra="op_sel:[0,0,0] op_sel_hi:[1,0,0]"),
                            valu("v_fma_mix_f32", b_, vE(t)[4 * m + e], vCor, 0, extra="op_sel:[1,0,0] op_sel_hi:[1,0,0]"),
                            valu("v_cvt_pk_bf16_f32", dst[e], a_, b_)]
                    if t == 0 and m == 0 and e == 0: ins += [valu("v_add_f32", vLs, a_, b_)]
                    else: ins += [valu("v_add_f32", vLs, vLs, a_), valu("v_add_f32", vLs, vLs, b_)]
                hi_ = info[('vf', b, t, m)] - 1
                lo = g if t == 0 else info[('vf', b, t - 1, m)]
                vq('valu', ins, lo, hi_)
        Sx = vS[1]; ins = []
        for e in range(8):
            ins += [valu("v_fma_f32", Sx[2 * e], Sx[2 * e], sC, vNm), valu("v_fma_f32", Sx[2 * e + 1], Sx[2 * e + 1], sC, vNm),
                    valu("v_exp_f32", Sx[2 * e], Sx[2 * e]), valu("v_exp_f32", Sx[2 * e + 1], Sx[2 * e + 1])]
            if e: ins += [valu("v_cvt_pk_bf16_f32", vE(15)[e - 1], Sx[2 * e - 2], Sx[2 * e - 1]), valu("v_add_f32", vLs, vLs, Sx[2 * e - 2]), valu("v_add_f32", vLs, vLs, Sx[2 * e - 1])]
        ins += [valu("v_add_f32", vLs, vLs, Sx[14]), valu("v_cvt_pk_bf16_f32", vE(15)[7], Sx[14], Sx[15]), valu("v_add_f32", vLs, vLs, Sx[15])]
        vq('valu', ins, info[('vf', b, 13, 1)], info[('vf', b, 15, 0)] - 1)
        ins = [valu("v_mov_b32", vCor, vLs), permswap("v_permlane32_swap_b32", vCor, vLs), valu("v_add_f32", vLs, vLs, vCor), valu("v_rcp_f32", vInv, vLs)]
        vq('valu', ins, info[('vf', b, 15, 0)], pend[nV + 15])
        sl = [0, 8, 1, 2, 3, 4, 9, 5, 6, 7]
        for k, j in enumerate(sl):
            if b == 0:
                lo = max(pend[nV + 15] + 2, p0[46] + k * 24); hi_ = p0[46] + k * 24 + 40
            else:
                lo = hi_ = END
            inv = vInv if j < 8 else vInv4
            so = salu("s_add_u32", sSo, sDT[j & 3] if j < 8 else sDTS, (b * 64 + ((j & 4) if j < 8 else 4 * (j - 8))) * 10240)
            ins = [so]
            for i2 in range(2):
                tmp = V(56 + 8 * i2, 8); pk = V(72 + 4 * ((2 * k + i2) & 3), 4)
                ins += [valu("v_accvgpr_read_b32", tmp[e], aO(j)[8 * i2 + e]) for e in range(8)]
                ins += [valu("v_mul_f32", tmp[e], inv, tmp[e]) for e in range(8)]
                ins += [valu("v_cvt_pk_bf16_f32", pk[e], tmp[2 * e], tmp[2 * e + 1]) for e in range(4)]
                ins += [bstore(pk, vOo, sO, sSo, i2 * 512, P.oflags, tag='O')]
            if b == 1 and k == 0: ins = stamp() + ins
            vq('valu', ins, lo, hi_)
    g0 = p0[1] + 2
    extra.setdefault(g0, []).append([wait_vm('WO')])
    for nt in range(7):
        for r2 in range(2): extra.setdefault(g0 + 1 + 2 * nt + r2, []).append([ds_read("ds_read_b64_tr_b16", A(4 * nt + 2 * r2, 2), vWoA, r2 * 1792 + nt * 32)])
    vq('wo', [valu("v_lshlrev_b32", vT[0], 4, vL)], g0, g0)
    for nt in range(7):
        vq('wo', [[salu("s_add_u32", sSo, sXo, nt * 1024), bstore(A(4 * nt, 4), vT[0], sWT, sSo, 0, P.oflags, tag='O')]], g0 + 8 + 3 * nt, g0 + 9 + 3 * nt)
    assert g0 + 16 < bgap[3]
    allit = [(g, 0, k, ins) for k, (g, ins) in enumerate(items)] + [(g, 1, k, ins) for g, v in extra.items() for k, ins in enumerate(v)]
    allit.sort(key=lambda x: x[:3])
    for g, _, _, ins in allit: sc.f('lds', ins, g, g)
    for n in range(0, 92):
        gs = [g for it in byint.get(n, []) for g in dma_groups(it, plan[it][1])]
        if not gs: continue
        a_, b_ = bgap[n] + 1, bgap[n + 1] - 1
        for k, g in enumerate(gs):
            pos = a_ + (k * (b_ - a_ + 1)) // len(gs)
            sc.f('dma', g, pos, pos)
    L += sc.run(['lds', 'dma', 'valu4', 'valu2', 'valu', 'wo'])
    if P.stamps:
        L += [wait_vm('all')] + stamp() + [raw("s_memrealtime s[94:95]"), raw("s_waitcnt lgkmcnt(0)", 'wait')]
        ns = nstamp[0]
        L += [salu("s_add_u32", S(8), S(100), WS_STAMP), salu("s_addc_u32", S(9), S(101), 0), salu("s_mov_b32", S(10), 1 << 20), salu("s_mov_b32", S(11), 0x20000)]
        vals = [S(96), S(94), S(98)] + [S(STAMP0 + 2 * k) for k in range(ns)]
        for k, x in enumerate(vals): L.append(valu("v_mov_b32", V(96 + k), x))
        L += [salu("s_lshl_b32", sT[0], S(2), 2), salu("s_add_u32", sT[0], sT[0], sW), salu("s_lshl_b32", sT[0], sT[0], 6), valu("v_mov_b32", vT[0], 0)]
        for k in range(4): L.append(bstore(V(96 + 4 * k, 4), vT[0], S(8, 4), sT[0], 16 * k))
    L += [label("L_k1_end"), raw("s_endpgm")]
    return finalize(L, group=P.group)

def gen_k2():
    L = [raw("s_cmp_ge_u32 s2, 256"), raw("s_cbranch_scc1 L_k2_end")]
    common_ids(L)
    sOut = S(8, 4)
    mh, nq = sT[0], sT[1]
    L += [salu("s_and_b32", mh, sJ, 1), salu("s_lshr_b32", nq, sJ, 1)]
    L += [salu("s_mul_i32", sT[2], sG, 1310720)]; srd(L, sO, S(88), S(89), sT[2], 0, 1310720)
    L += [salu("s_mul_i32", sT[2], sBr, 128 * 28672), salu("s_add_u32", sT[2], sT[2], WS_WOT)]; srd(L, sWT, S(88), S(89), sT[2], 0, 128 * 28672)
    L += [salu("s_lshl_b32", sT[2], sB, 1), salu("s_add_u32", sT[2], sT[2], mh), salu("s_mul_i32", sT[2], sT[2], 80 * 1792),
          salu("s_mul_i32", sT[3], sBr, 896), salu("s_add_u32", sT[2], sT[2], sT[3]), salu("s_mul_i32", sT[3], nq, 224), salu("s_add_u32", sT[2], sT[2], sT[3])]
    srd(L, sOut, S(84), S(85), sT[2], 0, 79 * 1792 + 224)
    sOo, sWo_ = S(40), S(41)
    L += [salu("s_mul_i32", sOo, sW, 16 * 10240), salu("s_mul_i32", sT[2], mh, 5120), salu("s_add_u32", sOo, sOo, sT[2]),
          salu("s_mul_i32", sWo_, sW, 16 * 28672), salu("s_mul_i32", sT[2], nq, 7168), salu("s_add_u32", sWo_, sWo_, sT[2])]
    v16, v16b = V(2), V(3)
    L += [valu("v_lshlrev_b32", v16, 4, vL), valu("v_add_u32", v16b, 4096, v16)]
    D = P.k2depth
    def fO(st, i): return V(16 + 48 * (st % D) + 4 * i, 4)
    def fW(st, i): return V(16 + 48 * (st % D) + 20 + 4 * i, 4)
    def acc(nt, qt): return A(4 * (nt * 5 + qt), 4)
    ks = list(range(16)) + list(range(64, 80))
    def loads(st):
        G = []
        k = ks[st]
        s1, s2 = S(44 + 2 * (st & 1)), S(45 + 2 * (st & 1))
        for i in range(5):
            g = [salu("s_add_u32", s1, sOo, k * 10240)] if i == 0 else []
            G.append(g + [bload(fO(st, i), v16 if i < 4 else v16b, sO, s1, (i & 3) * 1024, P.k2oflags)])
        for i in range(7):
            g = [salu("s_add_u32", s2, sWo_, k * 28672)] if i == 0 else []
            G.append(g + [bload(fW(st, i), v16 if i < 4 else v16b, sWT, s2, (i & 3) * 1024, P.k2wflags)])
        return G
    for st in range(D - 1):
        for g in loads(st): L += g
    RS = 464
    vWa, vRa, vOa = V(4), [V(5 + i) for i in range(5)], [V(10 + i) for i in range(5)]
    t0, t1, t2 = V(240), V(241), V(242)
    L += [valu("v_and_b32", t0, 15, vL), valu("v_mul_u32_u24", t0, RS, t0), valu("v_lshrrev_b32", t1, 4, vL), valu("v_lshl_add_u32", t0, t1, 4, t0),
          salu("s_mul_i32", sT[2], sW, 80 * RS), valu("v_add_u32", vWa, sT[2], t0), salu("s_mov_b32", sT[3], 4682)]
    for r in range(5):
        L += [valu("v_add_u32", t0, 256 * r, V(0)), valu("v_mul_u32_u24", t1, sT[3], t0), valu("v_lshrrev_b32", t1, 16, t1),
              valu("v_mul_u32_u24", t2, 14, t1), valu("v_sub_u32", t2, t0, t2),
              valu("v_mul_u32_u24", t0, 1792, t1), valu("v_lshl_add_u32", vOa[r], t2, 4, t0),
              valu("v_min_u32", t1, 79, t1), valu("v_mul_u32_u24", t0, RS, t1), valu("v_lshl_add_u32", vRa[r], t2, 5, t0)]
    sc = Sched()
    for st in range(32):
        p = sc.pos
        for nt in range(7):
            for qt in range(5):
                sc.m(mfma(False, acc(nt, qt), fW(st, nt), fO(st, qt), 0 if st == 0 else acc(nt, qt)), 8)
        if st + D - 1 < 32:
            for k, g in enumerate(loads(st + D - 1)):
                pos = p + (k * 33) // 12 - (1 if st == 0 else 0) * 0
                sc.f('ld', g, pos, pos)
    L += sc.run(['ld'])
    for nt in range(7):
        for qt in range(5):
            L.append(ds_write("ds_write_b128", vWa, acc(nt, qt), qt * 16 * RS + nt * 64, tag='pub'))
    L += [wait_ds('pub'), barrier()]
    vB2 = [V(243 + i) for i in range(5)]
    for r in range(5): L.append(valu("v_add_u32", vB2[r], 2 * 80 * RS, vRa[r]))
    def rd(r, w, h): return V(16 + 32 * r + 8 * w + 4 * h, 4)
    for r in range(5):
        for w in range(4):
            for h in range(2): L.append(ds_read("ds_read_b128", rd(r, w, h), vRa[r] if w < 2 else vB2[r], (w & 1) * 80 * RS + h * 16))
        if r >= 1: L += red(r - 1, rd, vOa, sOut)
    L += red(4, rd, vOa, sOut)
    L += [label("L_k2_end"), raw("s_endpgm")]
    return finalize(L, group=0)
def red(r, rd, vOa, sOut):
    L = []
    for h in range(2):
        for e in range(4):
            L += [valu("v_add_f32", rd(r, 0, h)[e], rd(r, 0, h)[e], rd(r, 1, h)[e]), valu("v_add_f32", rd(r, 2, h)[e], rd(r, 2, h)[e], rd(r, 3, h)[e])]
    for h in range(2):
        for e in range(4): L += [valu("v_add_f32", rd(r, 0, h)[e], rd(r, 0, h)[e], rd(r, 2, h)[e])]
    pk = rd(r, 1, 0)
    for h in range(2):
        for e in range(2): L.append(valu("v_cvt_pk_bf16_f32", pk[2 * h + e], rd(r, 0, h)[2 * e], rd(r, 0, h)[2 * e + 1]))
    L.append(bstore(pk, vOa[r], sOut, 0, 0))
    return L

def kd(name):
    s = f".amdhsa_kernel {name}\n"
    for d in ["next_free_vgpr 512", "next_free_sgpr 102", "accum_offset 256", "group_segment_fixed_size 0", "kernarg_size 104", "user_sgpr_count 2",
              "user_sgpr_kernarg_segment_ptr 1", "system_sgpr_workgroup_id_x 1", "float_denorm_mode_32 3"]:
        s += "  .amdhsa_" + d + "\n"
    return s + ".end_amdhsa_kernel\n"

def build(out, only=None):
    hdr = [l for l in open("cdna_kernels/" + NAME + ".s.ref").read().splitlines() if l.startswith(";") and "@launch" not in l and "Override" not in l and "grid=ceil" not in l]
    k1, k2 = NAME + "_kernel", "outproj_kernel"
    T = "\n".join(hdr) + "\n"
    if only != 'k2': T += f"; @launch kernel={k1} grid=(256,1,1) block=(256,1,1) lds=163840\n"
    if only != 'k1': T += f"; @launch kernel={k2} grid=(256,1,1) block=(256,1,1) lds=163840\n"
    T += '.amdgcn_target "amdgcn-amd-amdhsa--gfx950"\n.text\n'
    for name, g in ((k1, gen_k1), (k2, gen_k2)):
        T += f".globl {name}\n.p2align 8\n.type {name},@function\n{name}:\n" + "\n".join(("" if i.kind == 'label' else "    ") + i.text for i in g()) + "\n"
    T += '.section .rodata,"a"\n.p2align 6\n' + kd(k1) + ".p2align 6\n" + kd(k2)
    open(out, "w").write(T)

if __name__ == "__main__":
    out = sys.argv[1]
    only = None
    for a in sys.argv[2:]:
        k, v = a.split("=", 1)
        if k == 'only': only = v; continue
        setattr(P, k, eval(v) if k[-5:] != 'flags' else v.replace("+", " "))
    build(out, only)
```

```python
import sys, math
from asmlib import *
NAME = "concat_heads__mha_block_cached__gqa_block_cached__near_ridge"

class P:
    kvflags = "nt"; wflags = ""; xflags = ""; oflags = ""; woflags = ""
    DW = 2
    DKV = 7
    R = 6
    stamps = False
    kmin = [[4, 6, 8], [0, 4, 8]]
    bq, bk, bks, bv = 20, 24, 8, 24
    k2depth = 4
    k2oflags = ""; k2wflags = ""
    group = 2
    fake = False
    wsoff = 0
    nodma = False

SLOT = 16640
XBUF = [116480, 136960]
MISC = 157440
P4BUF = [MISC, MISC + 2048]
XCH_MAX = MISC + 4096
XCH_SUM = MISC + 5120
WS_WOT = 41943040
WS_STAMP = 50331648
CSCALE = math.log2(math.e) / 16.0
import struct
def f2u(x): return struct.unpack("<I", struct.pack("<f", x))[0]

sX, sWQ, sK, sV, sO, sWO, sWT = S(8, 4), S(12, 4), S(16, 4), S(20, 4), S(24, 4), S(28, 4), S(32, 4)
sW, sC = S(36), S(37)
sM0V, sM0K, sM0X = S(38), S(39), S(40)
sKV = S(41)
sWQo = S(42)
sXo = S(43)
sDT = [S(44), S(45), S(46), S(47)]; sDTS = S(48)
sT = [S(49), S(50), S(51), S(52), S(53), S(54)]
sSo = S(55)
sD = S(56)
sBr, sB, sJ, sG = S(57), S(58), S(59), S(3)
STAMP0 = 64
vL = V(1)
vAV = [V(2), V(3), V(4), V(5)]
vAK = [V(6), V(7), V(8), V(9)]; vAKS = V(10)
vAXO = [V(11), V(12), V(13), V(14)]; vAXS = [V(15), V(16), V(17), V(18)]
vDK, vDV, vDW, vDX = V(19), [V(20), V(21)], [V(22), V(23)], V(24)
vOo = V(25)
vQ4w, vQ4r = V(26), V(27)
vP4w, vP4r = V(28), V(29)
vXw, vXrM, vXrS = V(30), V(31), V(32)
vMx, vMx4, vNm, vNm4 = V(33), V(34), V(35), V(36)
vCor, vDel = V(37), V(38)
vLs, vL4 = V(39), V(40)
vInv, vInv4 = V(41), V(42)
vWoA = V(43)
vT = [V(44 + i) for i in range(12)]
vS = [V(56, 16), V(72, 16)]; vS4 = [V(88, 4), V(92, 4)]
vP = [V(56 + 4 * i, 4) for i in range(4)]
def vE(t): return V(96 + 8 * t, 8)
def vE4(t): return V(224 + 2 * t, 2)
def vQA(j): return V(96 + 16 * j, 16)
def aO(j): return A(16 * j, 16)
def aQ(j, i2): return A(8 * j + 4 * i2, 4)
def aQ4(s): return A(64 + 4 * s, 4)
NF = 12
def aF(i): return A(160 + 4 * (i % NF), 4)
def aP4(t, m): return A(208 + 8 * (t & 1) + 4 * m, 4)
def aXO(s): return A(224 + 4 * s, 4)
def aXS(s): return A(240 + 4 * s, 4)
def aRef(t): return A(224 + t)
def aRef4(t): return A(240 + t)

def common_ids(L):
    L += [raw("s_load_dwordx16 s[64:79], s[0:1], 0"), raw("s_load_dwordx8 s[80:87], s[0:1], 64"), raw("s_load_dwordx2 s[88:89], s[0:1], 96")]
    L += [salu("s_and_b32", sT[0], S(2), 7), salu("s_lshr_b32", sT[1], S(2), 3),
          salu("s_and_b32", sJ, sT[1], 7), salu("s_lshr_b32", sT[2], sT[1], 3),
          salu("s_lshr_b32", sBr, sT[0], 2), salu("s_and_b32", sT[3], sT[0], 3),
          salu("s_lshl_b32", sB, sT[3], 2), salu("s_add_u32", sB, sB, sT[2]),
          salu("s_lshl_b32", sG, sBr, 4), salu("s_add_u32", sG, sG, sB),
          salu("s_lshl_b32", sT[4], sT[3], 5), salu("s_add_u32", sT[4], sT[4], sT[1]),
          valu("v_lshrrev_b32", vT[0], 6, V(0)), valu("v_and_b32", vL, 63, V(0)),
          I(f"v_readfirstlane_b32 {sW}, {vT[0]}", 'valu', vT[0].regs(), sW.regs()),
          raw("s_waitcnt lgkmcnt(0)", 'wait'),
          salu("s_add_u32", S(88), S(88), P.wsoff), salu("s_addc_u32", S(89), S(89), 0),
          raw(f"s_cmp_eq_u32 {sBr}, 0")]
def srd(L, r, lo, hi, addlo, addhi, nrec):
    L += [salu("s_add_u32", r[0], lo, addlo), salu("s_addc_u32", r[1], hi, addhi),
          salu("s_mov_b32", r[2], nrec), salu("s_mov_b32", r[3], 0x20000)]

def plan_dma():
    occ = {s: [] for s in range(9)}
    plan = {}
    def free(s, a, b): return all(b <= x or a >= y for x, y in occ[s])
    def res(s, a, b):
        assert free(s, a, b), (s, a, b, occ[s]); occ[s].append((a, b))
    pool = P.DW + 2
    q4 = {}
    res(5, -1, 4); res(6, -1, 4)
    for b in range(2):
        q0 = 46 * b
        res(7, max(q0 - 3, -1), q0 + 13); res(8, max(q0 - 3, -1), q0 + 13)
    last = -1
    for b in range(2):
        q0 = 46 * b
        ws = []
        for i in range(14):
            iss = q0 + i - P.DW
            if b == 0 and i < pool: iss = -1
            if i < pool:
                c = [s for s in range(9) if free(s, iss, q0 + 16) and s not in ws]
                ws.append(min(c, key=lambda s: max([y for x, y in occ[s]] + [-9])))
            res(ws[i % pool], iss, q0 + i + 2); plan[('W', b, i)] = (iss, ws[i % pool] * SLOT)
        for c in range(7):
            iss = max(q0 + 2 * c - 3, -1)
            plan[('X', b, c)] = (iss, XBUF[c & 1])
        s = ws[10 % pool]
        res(s, q0 + 13, q0 + 16); q4[b] = s * SLOT
        for kind, base in (('K', 14), ('V', 30)):
            for t in range(16):
                n = 46 * b + base + t
                lo = max(last, n - P.DKV) if not (kind == 'K' and t < len(P.kmin[b])) else max(last, 46 * b + P.kmin[b][t])
                best = None
                for iss in range(lo, n):
                    c = [s for s in range(9) if free(s, iss, n + 2)]
                    if c: best = (iss, min(c, key=lambda s: min([x for x, y in occ[s] if x >= n + 2] + [999]))); break
                assert best, (kind, b, t)
                res(best[1], best[0], n + 2); plan[(kind, b, t)] = (best[0], best[1] * SLOT); last = best[0]
    return plan, q4

def dma_groups(item, addr):
    kind, b, t = item
    G = []
    tag = item
    if kind == 'K':
        for j in range(4):
            g = [salu("s_add_u32", M0, sM0K, addr + j * 528)]
            g.append(salu("s_add_u32", sD, sKV, b * 8 * 262144 + t * 16384) if j == 0 else raw("s_nop 0", 'nop'))
            g.append(dma(vDK, sK, sD, j * 512, P.kvflags, tag)); G.append(g)
    elif kind == 'V':
        for j in range(4):
            g = []
            if j == 0: g = [salu("s_add_u32", M0, sM0V, addr), salu("s_add_u32", sD, sKV, b * 8 * 262144 + t * 16384)]
            g.append(dma(vDV[j & 1], sV, sD, j * 1024, P.kvflags, tag)); G.append(g)
    elif kind == 'W':
        for j in range(4):
            g = []
            if j == 0: g = [salu("s_add_u32", M0, sM0V, addr)]
            g.append(salu("s_add_u32", sD, sWQo, b * 8 * 512 + t * 32 * 8192 + j * (16384 - 1024)))
            g.append(dma(vDW[j & 1], sWQ, sD, j * 1024, P.wflags, tag)); G.append(g)
    elif kind == 'X':
        for j in range(5):
            G.append([salu("s_add_u32", M0, sM0X, addr + j * 4096), salu("s_add_u32", sD, sXo, t * 128 + j * 4 * 7168),
                      dma(vDX, sX, sD, 0, P.xflags, tag)])
    return G

nstamp = [0]
def stamp():
    if not P.stamps: return []
    k = nstamp[0]; nstamp[0] += 1
    assert STAMP0 + 2 * k + 1 < 96
    return [raw(f"s_memtime s[{STAMP0+2*k}:{STAMP0+2*k+1}]")]

def gen_k1():
    nstamp[0] = 0
    L = []
    L += [raw("s_cmp_ge_u32 s2, 256"), raw("s_cbranch_scc1 L_k1_end")]
    if P.stamps: L += [raw("s_memrealtime s[96:97]"), raw("s_memtime s[98:99]")]
    common_ids(L)
    for k in range(5):
        L.append(raw(f"s_cselect_b64 s[{64+2*k}:{65+2*k}], s[{64+2*k}:{65+2*k}], s[{74+2*k}:{75+2*k}]"))
    L += [salu("s_mul_i32", sT[0], sB, 143360)]; srd(L, sX, S(64), S(65), sT[0], 0, 143360)
    L += [salu("s_lshl_b32", sT[0], sB, 22) if not P.fake else salu("s_mov_b32", sT[0], 0)]; srd(L, sK, S(66), S(67), sT[0], 0, 1 << 22); srd(L, sV, S(68), S(69), sT[0], 0, 1 << 22)
    srd(L, sWQ, S(70), S(71), 0, 0, 448 * 8192)
    L += [salu("s_mul_i32", sT[0], sT[4], 32 * 896)]; srd(L, sWO, S(72), S(73), sT[0], 0, 32 * 896)
    L += [salu("s_mul_i32", sT[0], sG, 1310720)]; srd(L, sO, S(88), S(89), sT[0], 0, 1310720)
    L += [salu("s_lshl_b32", sT[0], sBr, 7), salu("s_add_u32", sT[0], sT[0], sT[4]), salu("s_mul_i32", sT[0], sT[0], 28672),
          salu("s_add_u32", sT[0], sT[0], WS_WOT)]; srd(L, sWT, S(88), S(89), sT[0], 0, 28672)
    if P.stamps: L += [salu("s_mov_b64", S(100, 2), S(88, 2))]
    L += [salu("s_mov_b32", sC, f2u(CSCALE)), salu("s_lshl_b32", sM0V, sW, 12), salu("s_mul_i32", sM0K, sW, 4160),
          salu("s_lshl_b32", sM0X, sW, 10), salu("s_lshl_b32", sKV, sJ, 18), salu("s_lshl_b32", sWQo, sJ, 9), salu("s_mul_i32", sXo, sW, 7168)]
    if P.fake: L += [salu("s_mov_b32", sKV, 0)]
    t0, t1, t2, t3, t4, t5 = vT[:6]
    L += [valu("v_lshrrev_b32", t0, 5, vL), valu("v_and_b32", t1, 31, vL), salu("s_lshl_b32", sT[0], sW, 3),
          valu("v_add_u32", t2, sT[0], t0)]
    for par in range(2):
        L += [valu("v_add_u32", t3, 2 * par, t0), valu("v_lshlrev_b32", t3, 2, t3), valu("v_xor_b32", t3, t3, t1), valu("v_lshlrev_b32", t3, 4, t3),
              valu("v_lshl_add_u32", vDV[par], t2, 9, t3), valu("v_lshl_add_u32", vDW[par], t2, 13, t3)]
    L += [salu("s_lshl_b32", sT[0], sW, 11), valu("v_lshlrev_b32", t3, 13, t0), valu("v_lshl_add_u32", t3, t1, 4, t3), valu("v_add_u32", vDK, sT[0], t3)]
    L += [salu("s_and_b32", sT[0], sW, 1), salu("s_lshl_b32", sT[0], sT[0], 2), valu("v_lshrrev_b32", t3, 4, vL), valu("v_add_u32", t3, sT[0], t3),
          valu("v_and_b32", t4, 7, vL), valu("v_xor_b32", t3, t3, t4), valu("v_lshlrev_b32", t3, 4, t3),
          valu("v_lshrrev_b32", t4, 3, vL), valu("v_mul_u32_u24", t4, 896, t4), valu("v_add_u32", vDX, t3, t4)]
    plan, q4 = plan_dma()
    order = []
    for b in range(2):
        for i in range(14):
            if i % 2 == 0: order.append(('X', b, i // 2))
            order.append(('W', b, i))
        order += [('K', b, t) for t in range(16)] + [('V', b, t) for t in range(16)]
    need = lambda it: 46 * it[1] + {'W': it[2], 'X': 2 * it[2], 'K': 14 + it[2], 'V': 30 + it[2]}[it[0]]
    byint = {}
    for it in sorted(order, key=lambda it: (plan[it][0], need(it))): byint.setdefault(plan[it][0], []).append(it)
    if 1: print("dma plan:", {k: [(i[0] + str(i[2]), plan[i][1] // SLOT) for i in v] for k, v in byint.items()})
    for it in byint.get(-1, []):
        for g in dma_groups(it, plan[it][1]): L += g
    WOL = 5 * SLOT
    L += [salu("s_mul_i32", sT[0], sW, 224), salu("s_mov_b32", sT[1], 4682)]
    for p in range(7):
        L += [valu("v_add_u32", t0, 64 * p, vL), valu("v_mul_u32_u24", t1, sT[1], t0), valu("v_lshrrev_b32", t1, 16, t1),
              valu("v_mul_u32_u24", t2, 14, t1), valu("v_sub_u32", t2, t0, t2),
              valu("v_and_b32", t3, 0x13, t1), valu("v_and_b32", t4, 4, t1), valu("v_lshl_add_u32", t3, t4, 1, t3),
              valu("v_and_b32", t4, 8, t1), valu("v_lshrrev_b32", t4, 1, t4), valu("v_add_u32", t3, t3, t4),
              valu("v_mul_u32_u24", t3, 896, t3), valu("v_lshl_add_u32", t3, t2, 4, t3),
              salu("s_add_u32", M0, sXo, WOL + p * 1024), raw("s_nop 0", 'nop'), dma(t3, sWO, sT[0], 0, P.woflags, 'WO')]
    q, hi, r, c, g4, l16 = vT[6:12]
    L += [valu("v_and_b32", q, 31, vL), valu("v_lshrrev_b32", hi, 5, vL), valu("v_bfe_u32", r, vL, 2, 2), valu("v_and_b32", c, 3, vL),
          valu("v_lshrrev_b32", g4, 4, vL), valu("v_and_b32", l16, 15, vL)]
    L += [valu("v_lshl_add_u32", t0, hi, 3, r), valu("v_lshlrev_b32", t0, 9, t0), valu("v_and_b32", t1, 1, g4), valu("v_lshl_add_u32", t0, t1, 5, t0),
          valu("v_and_b32", t1, 1, c), valu("v_lshl_add_u32", t0, t1, 4, t0), valu("v_lshrrev_b32", t1, 1, c), valu("v_lshl_add_u32", t0, t1, 3, t0),
          valu("v_xor_b32", t1, sW, r)]
    for jj in range(4): L += [valu("v_xor_b32", t2, jj, t1), valu("v_lshl_add_u32", vAV[jj], t2, 6, t0)]
    L += [valu("v_and_b32", t0, 3, q), valu("v_and_b32", t1, 4, q), valu("v_lshl_add_u32", t0, t1, 1, t0), valu("v_and_b32", t1, 8, q),
          valu("v_lshrrev_b32", t1, 1, t1), valu("v_add_u32", t0, t0, t1), valu("v_mul_u32_u24", t0, 1040, t0),
          valu("v_lshrrev_b32", t1, 4, q), valu("v_lshl_add_u32", t0, t1, 9, t0), valu("v_lshl_add_u32", t0, hi, 4, t0)]
    for jj in range(4): L += [salu("s_xor_b32", sT[0], sW, jj), salu("s_lshl_b32", sT[0], sT[0], 6), valu("v_add_u32", vAK[jj], sT[0], t0)]
    L += [salu("s_and_b32", sT[1], sW, 1), salu("s_lshr_b32", sT[2], sW, 1),
          salu("s_lshl_b32", sT[0], sT[1], 9), valu("v_mul_u32_u24", t0, 1040, l16), valu("v_and_b32", t1, 1, g4), valu("v_lshl_add_u32", t0, t1, 8, t0),
          valu("v_lshl_add_u32", t0, hi, 4, t0), valu("v_add_u32", vAKS, sT[0], t0)]
    L += [valu("v_bfe_u32", t0, q, 1, 3), valu("v_xor_b32", t0, t0, hi), valu("v_lshlrev_b32", t1, 7, q), salu("s_add_u32", sT[0], sM0V, XBUF[0])]
    for s in range(4):
        L += [valu("v_xor_b32", t2, 2 * s, t0), valu("v_lshl_add_u32", t2, t2, 4, t1), valu("v_add_u32", vAXO[s], sT[0], t2), valu("v_add_u32", vAXS[s], XBUF[0] + 4 * 4096, t2)]
    L += [valu("v_lshrrev_b32", t0, 4, q), valu("v_lshlrev_b32", t1, 4, l16), valu("v_lshl_add_u32", t2, t0, 10, t1), valu("v_lshl_add_u32", t2, hi, 8, t2),
          salu("s_lshl_b32", sT[0], sW, 11), valu("v_add_u32", vOo, sT[0], t2)]
    L += [valu("v_lshl_add_u32", t2, t0, 13, t1), valu("v_lshl_add_u32", t2, hi, 9, t2), salu("s_add_u32", sT[0], sT[0], q4[0]), valu("v_add_u32", vQ4w, sT[0], t2),
          salu("s_lshl_b32", sT[0], sT[2], 13), salu("s_add_u32", sT[0], sT[0], q4[0]), valu("v_lshlrev_b32", t2, 4, vL), valu("v_add_u32", vQ4r, sT[0], t2),
          valu("v_add_u32", vP4r, MISC, t2)]
    L += [salu("s_lshl_b32", sT[0], sT[1], 10), salu("s_lshl_b32", sT[3], sT[2], 8), salu("s_add_u32", sT[0], sT[0], sT[3]), salu("s_add_u32", sT[0], sT[0], MISC),
          valu("v_lshl_add_u32", t2, hi, 9, t1), valu("v_and_b32", t3, 1, g4), valu("v_lshl_add_u32", t2, t3, 3, t2), valu("v_add_u32", vP4w, sT[0], t2)]
    L += [salu("s_lshl_b32", sT[0], sT[2], 9), salu("s_add_u32", sT[0], sT[0], MISC), valu("v_lshlrev_b32", t2, 5, l16), valu("v_add_u32", vXrM, sT[0], t2),
          salu("s_lshl_b32", sT[0], sT[1], 4), valu("v_lshl_add_u32", t2, g4, 2, vXrM), valu("v_add_u32", vXw, sT[0], t2),
          valu("v_lshlrev_b32", t2, 5, q), valu("v_add_u32", vXrS, MISC, t2)]
    L += [valu("v_lshl_add_u32", t2, hi, 4, r), valu("v_lshl_add_u32", t2, t3, 2, t2), valu("v_mul_u32_u24", t2, 224, t2), valu("v_lshl_add_u32", t2, c, 3, t2),
          salu("s_add_u32", sT[0], sXo, WOL), valu("v_add_u32", vWoA, sT[0], t2)]
    for jj in range(4):
        L += [salu("s_xor_b32", sT[0], sW, jj), salu("s_lshl_b32", sT[3], sJ, 3), salu("s_add_u32", sT[0], sT[0], sT[3]), salu("s_mul_i32", sDT[jj], sT[0], 10240)]
    L += [salu("s_lshl_b32", sT[0], sW, 11), salu("s_sub_u32", sDTS, sDT[0], sT[0]), salu("s_add_u32", sDTS, sDTS, 8192)]

    sc = Sched()
    frags = []
    p0 = {}; pend = {}
    info = {}
    def addfrag(step, spec):
        frags.append(dict(step=step, spec=spec, first=sc.pos, last=sc.pos)); return len(frags) - 1
    for b in range(2):
        q0 = 46 * b
        for i in range(14):
            n = q0 + i; p0[n] = sc.pos
            for m in range(2):
                s = 2 * (i & 1) + m
                js = [0, 4, 1, 2, 3, 5, 6, 7] if (i == 13 and m == 1) else range(8)
                for j in js:
                    f = addfrag(n, ('V', m, j))
                    first = (i == 0 and m == 0)
                    if j in (0, 4) and i == 13 and m == 1:
                        info[('qs', b, j)] = sc.m(mfma(True, vQA(8 + j // 4), aF(f), aXS(s), vQA(8 + j // 4)), P.bq)
                    info[('qo', b, j)] = sc.m(mfma(True, vQA(j), aF(f), aXO(s), 0 if first else vQA(j)), P.bq)
                    if j in (0, 4) and not (i == 13 and m == 1):
                        sc.m(mfma(True, vQA(8 + j // 4), aF(f), aXS(s), 0 if first else vQA(8 + j // 4)), P.bq)
                    frags[f]['last'] = sc.pos - 1
            pend[n] = sc.pos - 1
        for t in range(16):
            n = q0 + 14 + t; p0[n] = sc.pos
            own = [(j, i2) for j in ([0, 4, 1, 2, 3, 5, 6, 7] if t == 0 else range(8)) for i2 in range(2)]
            if t == 0: seq = [('o', x) for x in own] + [('s', s) for s in range(8)]
            elif t == 15: seq = [('s', s) for s in range(8)] + [('o', x) for x in own]
            else:
                seq = []
                for s in range(8): seq += [('o', own[2 * s]), ('o', own[2 * s + 1]), ('s', s)]
            fo = fs = True
            for k, x in seq:
                f = addfrag(n, ('K', k, x))
                if k == 'o':
                    pp = sc.m(mfma(True, vS[t & 1], aF(f), aQ(*x), 0 if fo else vS[t & 1]), P.bk)
                    if fo: info[('kof', b, t)] = pp
                    fo = False; info[('kol', b, t)] = pp
                    if t == 0 and x[1] == 0: info[('kq', b, x[0])] = pp
                else:
                    pp = sc.m(mfma(False, vS4[t & 1], aF(f), aQ4(x), 0 if fs else vS4[t & 1]), P.bks)
                    if fs: info[('ksf', b, t)] = pp
                    fs = False; info[('ksl', b, t)] = pp
            pend[n] = sc.pos - 1
        for t in range(16):
            n = q0 + 30 + t; p0[n] = sc.pos
            for m in range(2):
                info[('vf', b, t, m)] = sc.pos
                Bo = vE(15).sub(4 * m, 4) if t == 15 else vP[(2 * t + m) % 4]
                for j in range(8):
                    f = addfrag(n, ('V', m, j))
                    first = (t == 0 and m == 0)
                    info[('vo', b, j)] = sc.m(mfma(True, aO(j), aF(f), Bo, 0 if first else aO(j)), P.bv)
                    if j in (0, 4): info[('vo', b, 8 + j // 4)] = sc.m(mfma(True, aO(8 + j // 4), aF(f), aP4(t, m), 0 if first else aO(8 + j // 4)), P.bv)
                    frags[f]['last'] = sc.pos - 1
            pend[n] = sc.pos - 1
    END = sc.pos - 1
    def tile_of(n):
        b, r_ = divmod(n, 46)
        return ('W', b, r_) if r_ < 14 else (('K', b, r_ - 14) if r_ < 30 else ('V', b, r_ - 30))
    base = {'V': 0, 'K': 0}
    bgap = {}
    extra = {}
    prev = None
    items = []
    for fi, fr in enumerate(frags):
        gap = -1 if fi < P.R else frags[fi - P.R]['first']
        if fi >= NF: assert frags[fi - NF]['last'] <= gap
        n = fr['step']; b, rn = divmod(n, 46)
        it = tile_of(n); addr = plan[it][1]
        cls = 'K' if it[0] == 'K' else 'V'
        if n != prev:
            prev = n; bgap[n] = gap
            tags = [it] + ([('X', b, rn // 2)] if rn < 14 and rn % 2 == 0 else [])
            pre = [wait_vm(tags), wait_ds('pub')]
            if rn in (0, 14, 30): pre += stamp()
            items.append((gap, pre + [barrier()]))
            lim = 55039 if cls == 'V' else 65055
            if not (0 <= addr - base[cls] <= lim):
                ups = [plan[tile_of(x)][1] for x in range(n, 92) if (tile_of(x)[0] == 'K') == (cls == 'K')]
                def cover(bs):
                    k = 0
                    for u in ups:
                        if 0 <= u - bs <= lim: k += 1
                        else: break
                    return k
                nb = max([addr - k * SLOT for k in range(4) if addr - k * SLOT >= 0], key=cover)
                for rg in (vAV if cls == 'V' else vAK + [vAKS]): items.append((gap, [valu("v_add_u32", rg, nb - base[cls], rg)]))
                base[cls] = nb
            if rn < 14 and rn % 2 == 0:
                xo = XBUF[(rn // 2) & 1] - XBUF[0]
                for s in (0, 1):
                    items.append((gap, [ds_read("ds_read_b128", aXO(s), vAXO[s], xo, tag="pub")])); items.append((gap, [ds_read("ds_read_b128", aXS(s), vAXS[s], xo, tag="pub")]))
                for k, s in enumerate((2, 3)):
                    extra.setdefault(p0[n] + 2 * k, []).append([ds_read("ds_read_b128", aXO(s), vAXO[s], xo, tag="pub")])
                    extra.setdefault(p0[n] + 2 * k + 1, []).append([ds_read("ds_read_b128", aXS(s), vAXS[s], xo, tag="pub")])
            if rn >= 30:
                t = rn - 30
                for m in range(2): items.append((gap, [ds_read("ds_read_b128", aP4(t, m), vP4r, (t & 1) * 2048 + m * 1024, tag="pub")]))
        d = aF(fi); o = addr - base[cls]
        sp = fr['spec']
        if sp[0] == 'V':
            _, m, j = sp
            for r2 in range(2): items.append((gap, [ds_read("ds_read_b64_tr_b16", d.sub(2 * r2, 2), vAV[j & 3], o + m * 8192 + r2 * 2048 + (j & 4) * 64)]))
        elif sp[1] == 'o':
            j, i2 = sp[2]; items.append((gap, [ds_read("ds_read_b128", d, vAK[j & 3], o + (j & 4) * 64 + i2 * 32)]))
        else:
            items.append((gap, [ds_read("ds_read_b128", d, vAKS, o + sp[2] * 32)]))
    bgap[92] = END
    def vq(q, ins, lo, hi):
        for x in ins: sc.f(q, x, lo, hi)
    for b in range(2):
        q0 = 46 * b
        lo = info[('qs', b, 4)] + 2
        xg = p0[q0 + 14] + 3
        if b == 1 and q4[1] != q4[0]: vq('valu', [valu('v_add_u32', vQ4w, q4[1] - q4[0], vQ4w), valu('v_add_u32', vQ4r, q4[1] - q4[0], vQ4r)], lo - 10, xg - 3)
        for k in range(2):
            for i2 in range(2):
                tmp = V(44 + 4 * i2, 4)
                vq('valu', [valu("v_cvt_pk_bf16_f32", tmp[e], vQA(8 + k)[8 * i2 + 2 * e], vQA(8 + k)[8 * i2 + 2 * e + 1]) for e in range(4)], lo, xg - 3)
                vq('valu', [ds_write("ds_write_b128", vQ4w, tmp, i2 * 1024 + k * 256, tag='pub')], lo, xg - 3)
        extra.setdefault(xg, []).append([wait_ds('pub'), barrier()])
        for s in range(8): extra.setdefault(xg + 1 + s // 2, []).append([ds_read("ds_read_b128", aQ4(s), vQ4r, s * 1024)])
        for j in [0, 4, 1, 2, 3, 5, 6, 7]:
            ins = []
            for e in range(8):
                ins.append(valu("v_cvt_pk_bf16_f32", vT[8 + (e & 3)], vQA(j)[2 * e], vQA(j)[2 * e + 1]))
                if e >= 1: ins.append(valu("v_accvgpr_write_b32", A(8 * j + e - 1), vT[8 + ((e - 1) & 3)]))
            ins.append(valu("v_accvgpr_write_b32", A(8 * j + 7), vT[8 + 3]))
            vq('valu2', ins, min(info[('qo', b, j)] + 2, info[('kq', b, j)] - 1), info[('kq', b, j)] - 1)
        def maxes(acc, src, n, first):
            ins = []
            if first: ins.append(valu("v_max_f32", acc, src[0], src[1]))
            for e in range(1 if first else 0, n // 2): ins.append(valu("v_max3_f32", acc, acc, src[2 * e], src[2 * e + 1]))
            return ins
        for t in range(15):
            Sx = vS[t & 1]; S4 = vS4[t & 1]
            lo4 = info[('ksl', b, t)] + 2; hi4 = info[('ksf', b, t + 2)] - 1 if t < 14 else info[('ksl', b, 15)]
            ins = maxes(vMx4, S4, 4, t == 0) + [valu("v_mul_f32", vNm4, Neg(sC) if False else sC, Neg(vMx4), extra=""), valu("v_accvgpr_write_b32", aRef4(t), vNm4)]
            ins[-2] = I(f"v_mul_f32_e64 {vNm4}, {sC}, -{vMx4}", 'valu', sC.regs() + vMx4.regs(), vNm4.regs())
            for op, e in (("v_fma_mixlo_f16", 0), ("v_fma_mixlo_f16", 2), ("v_fma_mixhi_f16", 1), ("v_fma_mixhi_f16", 3)):
                ins.append(valu(op, vE4(t)[e // 2], S4[e], sC, vNm4, rmw=True))
            vq('valu4', ins, lo4, hi4)
            lo = info[('kol', b, t)] + 2; hi_ = info[('kof', b, t + 2)] - 1 if t < 14 else info[('kol', b, 15)]
            ins = maxes(vMx, Sx, 16, t == 0) + [I(f"v_mul_f32_e64 {vNm}, {sC}, -{vMx}", 'valu', sC.regs() + vMx.regs(), vNm.regs()), valu("v_accvgpr_write_b32", aRef(t), vNm)]
            for e in range(8):
                ins += [valu("v_fma_f32", Sx[2 * e], Sx[2 * e], sC, vNm), valu("v_fma_f32", Sx[2 * e + 1], Sx[2 * e + 1], sC, vNm),
                        valu("v_exp_f32", Sx[2 * e], Sx[2 * e]), valu("v_exp_f32", Sx[2 * e + 1], Sx[2 * e + 1])]
                if e: ins.append(valu("v_cvt_pk_f16_f32", vE(t)[e - 1], Sx[2 * e - 2], Sx[2 * e - 1]))
            ins.append(valu("v_cvt_pk_f16_f32", vE(t)[7], Sx[14], Sx[15]))
            vq('valu', ins, lo, hi_)
        nV = q0 + 30
        lo = info[('ksl', b, 15)] + 2
        x1 = lo + 3
        assert x1 + 4 < bgap[nV], (x1, bgap[nV])
        vq('valu4', maxes(vMx4, vS4[1], 4, False) + [ds_write("ds_write_b32", vXw, vMx4, XCH_MAX - MISC, tag='pub')], lo, x1 - 1)
        tA, tB = V(44, 4), V(48, 4)
        extra.setdefault(x1, []).append([wait_ds('pub'), barrier(), ds_read("ds_read_b128", tA, vXrM, XCH_MAX - MISC), ds_read("ds_read_b128", tB, vXrM, XCH_MAX - MISC + 16)])
        ins = [valu("v_max3_f32", vMx4, tA[0], tA[1], tA[2]), valu("v_max3_f32", vMx4, vMx4, tA[3], tB[0]), valu("v_max3_f32", vMx4, vMx4, tB[1], tB[2]),
               valu("v_max_f32", vMx4, vMx4, tB[3]), I(f"v_mul_f32_e64 {vNm4}, {sC}, -{vMx4}", 'valu', sC.regs() + vMx4.regs(), vNm4.regs())]
        vq('valu4', ins, x1 + 2, bgap[nV] - 1)
        u = [V(52), V(53), V(54), V(55)]
        def p4(t, lo, hi):
            if t < 15:
                ins = [valu("v_accvgpr_read_b32", vDel, aRef4(t)), valu("v_sub_f32", vDel, vNm4, vDel)]
                for e in range(4): ins.append(valu("v_fma_mix_f32", u[e], vE4(t)[e // 2], "1.0", vDel, extra=f"op_sel:[{e&1},0,0] op_sel_hi:[1,0,0]"))
            else:
                ins = [valu("v_fma_f32", u[e], vS4[1][e], sC, vNm4) for e in range(4)]
            ins += [valu("v_exp_f32", u[e], u[e]) for e in range(4)]
            if t == 0: ins += [valu("v_add_f32", vL4, u[0], u[1])]
            else: ins += [valu("v_add_f32", vL4, vL4, u[0]), valu("v_add_f32", vL4, vL4, u[1])]
            ins += [valu("v_cvt_pk_bf16_f32", u[0], u[0], u[1]), valu("v_add_f32", vL4, vL4, u[2]), valu("v_add_f32", vL4, vL4, u[3]),
                    valu("v_cvt_pk_bf16_f32", u[1], u[2], u[3]), ds_write("ds_write_b64", vP4w, V(52, 2), (t & 1) * 2048, tag='pub')]
            vq('valu4', ins, lo, hi)
        p4(0, x1 + 2, bgap[nV] - 1)
        for t in range(1, 16): p4(t, bgap[nV + t - 1] + 1, bgap[nV + t] - 3)
        vq('valu4', [ds_write("ds_write_b32", vXw, vL4, XCH_SUM - MISC, tag='pub')], bgap[nV + 14] + 1, bgap[nV + 15] - 1)
        tA, tB = V(88, 4), V(92, 4)
        extra.setdefault(bgap[nV + 15] + 1, []).append([ds_read("ds_read_b128", tA, vXrS, XCH_SUM - MISC), ds_read("ds_read_b128", tB, vXrS, XCH_SUM - MISC + 16)])
        ins = [valu("v_add_f32", tA[0], tA[0], tA[1]), valu("v_add_f32", tA[2], tA[2], tA[3]), valu("v_add_f32", tB[0], tB[0], tB[1]), valu("v_add_f32", tB[2], tB[2], tB[3]),
               valu("v_add_f32", tA[0], tA[0], tA[2]), valu("v_add_f32", tB[0], tB[0], tB[2]), valu("v_add_f32", tA[0], tA[0], tB[0]), valu("v_rcp_f32", vInv4, tA[0])]
        vq('valu4', ins, bgap[nV + 15] + 4, pend[nV + 15])
        g = info[('kol', b, 15)]
        ins = maxes(vMx, vS[1], 16, False) + [valu("v_mov_b32", vNm, vMx), permswap("v_permlane32_swap_b32", vNm, vMx), valu("v_max_f32", vMx, vMx, vNm),
                                               I(f"v_mul_f32_e64 {vNm}, {sC}, -{vMx}", 'valu', sC.regs() + vMx.regs(), vNm.regs())]
        vq('valu', ins, g, g)
        w_ = [V(44), V(45), V(46), V(47)]
        for t in range(15):
            for m in range(2):
                ins = []
                if m == 0: ins = [valu("v_accvgpr_read_b32", vCor, aRef(t)), valu("v_sub_f32", vCor, vNm, vCor), valu("v_exp_f32", vCor, vCor)]
                dst = vP[(2 * t + m) % 4]
                for e in range(4):
                    a_, b_ = w_[2 * (e & 1)], w_[2 * (e & 1) + 1]
                    ins += [valu("v_fma_mix_f32", a_, vE(t)[4 * m + e], vCor, 0, extra="op_sel:[0,0,0] op_sel_hi:[1,0,0]"),
                            valu("v_fma_mix_f32", b_, vE(t)[4 * m + e], vCor, 0, extra="op_sel:[1,0,0] op_sel_hi:[1,0,0]"),
                            valu("v_cvt_pk_bf16_f32", dst[e], a_, b_)]
                    if t == 0 and m == 0 and e == 0: ins += [valu("v_add_f32", vLs, a_, b_)]
                    else: ins += [valu("v_add_f32", vLs, vLs, a_), valu("v_add_f32", vLs, vLs, b_)]
                hi_ = info[('vf', b, t, m)] - 1
                lo = g if t == 0 else info[('vf', b, t - 1, m)]
                vq('valu', ins, lo, hi_)
        Sx = vS[1]; ins = []
        for e in range(8):
            ins += [valu("v_fma_f32", Sx[2 * e], Sx[2 * e], sC, vNm), valu("v_fma_f32", Sx[2 * e + 1], Sx[2 * e + 1], sC, vNm),
                    valu("v_exp_f32", Sx[2 * e], Sx[2 * e]), valu("v_exp_f32", Sx[2 * e + 1], Sx[2 * e + 1])]
            if e: ins += [valu("v_cvt_pk_bf16_f32", vE(15)[e - 1], Sx[2 * e - 2], Sx[2 * e - 1]), valu("v_add_f32", vLs, vLs, Sx[2 * e - 2]), valu("v_add_f32", vLs, vLs, Sx[2 * e - 1])]
        ins += [valu("v_add_f32", vLs, vLs, Sx[14]), valu("v_cvt_pk_bf16_f32", vE(15)[7], Sx[14], Sx[15]), valu("v_add_f32", vLs, vLs, Sx[15])]
        vq('valu', ins, info[('vf', b, 13, 1)], info[('vf', b, 15, 0)] - 1)
        ins = [valu("v_mov_b32", vCor, vLs), permswap("v_permlane32_swap_b32", vCor, vLs), valu("v_add_f32", vLs, vLs, vCor), valu("v_rcp_f32", vInv, vLs)]
        vq('valu', ins, info[('vf', b, 15, 0)], pend[nV + 15])
        sl = [0, 8, 1, 2, 3, 4, 9, 5, 6, 7]
        for k, j in enumerate(sl):
            if b == 0:
                lo = max(pend[nV + 15] + 2, p0[46] + k * 24); hi_ = p0[46] + k * 24 + 40
            else:
                lo = hi_ = END
            inv = vInv if j < 8 else vInv4
            so = salu("s_add_u32", sSo, sDT[j & 3] if j < 8 else sDTS, (b * 64 + ((j & 4) if j < 8 else 4 * (j - 8))) * 10240)
            ins = [so]
            for i2 in range(2):
                tmp = V(56 + 8 * i2, 8); pk = V(72 + 4 * ((2 * k + i2) & 3), 4)
                ins += [valu("v_accvgpr_read_b32", tmp[e], aO(j)[8 * i2 + e]) for e in range(8)]
                ins += [valu("v_mul_f32", tmp[e], inv, tmp[e]) for e in range(8)]
                ins += [valu("v_cvt_pk_bf16_f32", pk[e], tmp[2 * e], tmp[2 * e + 1]) for e in range(4)]
                ins += [bstore(pk, vOo, sO, sSo, i2 * 512, P.oflags, tag='O')]
            if b == 1 and k == 0: ins = stamp() + ins
            vq('valu', ins, lo, hi_)
    g0 = p0[1] + 2
    extra.setdefault(g0, []).append([wait_vm('WO')])
    for nt in range(7):
        for r2 in range(2): extra.setdefault(g0 + 1 + 2 * nt + r2, []).append([ds_read("ds_read_b64_tr_b16", A(4 * nt + 2 * r2, 2), vWoA, r2 * 1792 + nt * 32)])
    vq('wo', [valu("v_lshlrev_b32", vT[0], 4, vL)], g0, g0)
    for nt in range(7):
        vq('wo', [[salu("s_add_u32", sSo, sXo, nt * 1024), bstore(A(4 * nt, 4), vT[0], sWT, sSo, 0, P.oflags, tag='O')]], g0 + 8 + 3 * nt, g0 + 9 + 3 * nt)
    assert g0 + 16 < bgap[3]
    allit = [(g, 0, k, ins) for k, (g, ins) in enumerate(items)] + [(g, 1, k, ins) for g, v in extra.items() for k, ins in enumerate(v)]
    allit.sort(key=lambda x: x[:3])
    for g, _, _, ins in allit: sc.f('lds', ins, g, g)
    for n in range(0, 92):
        gs = [g for it in byint.get(n, []) for g in dma_groups(it, plan[it][1])]
        if not gs or P.nodma: continue
        a_, b_ = bgap[n] + 1, bgap[n + 1] - 1
        for k, g in enumerate(gs):
            pos = a_ + (k * (b_ - a_ + 1)) // len(gs)
            sc.f('dma', g, pos, pos)
    L += sc.run(['lds', 'dma', 'valu4', 'valu2', 'valu', 'wo'])
    if P.stamps:
        L += [wait_vm('all')] + stamp() + [raw("s_memrealtime s[94:95]"), raw("s_waitcnt lgkmcnt(0)", 'wait')]
        ns = nstamp[0]
        L += [salu("s_add_u32", S(8), S(100), WS_STAMP), salu("s_addc_u32", S(9), S(101), 0), salu("s_mov_b32", S(10), 1 << 20), salu("s_mov_b32", S(11), 0x20000)]
        vals = [S(96), S(94), S(98)] + [S(STAMP0 + 2 * k) for k in range(ns)]
        for k, x in enumerate(vals): L.append(valu("v_mov_b32", V(96 + k), x))
        L += [salu("s_lshl_b32", sT[0], S(2), 2), salu("s_add_u32", sT[0], sT[0], sW), salu("s_lshl_b32", sT[0], sT[0], 6), valu("v_mov_b32", vT[0], 0)]
        for k in range(4): L.append(bstore(V(96 + 4 * k, 4), vT[0], S(8, 4), sT[0], 16 * k))
    L += [label("L_k1_end"), raw("s_endpgm")]
    return finalize(L, group=P.group)

def gen_k2():
    L = [raw("s_cmp_ge_u32 s2, 256"), raw("s_cbranch_scc1 L_k2_end")]
    common_ids(L)
    sOut = S(8, 4)
    mh, nq = sT[0], sT[1]
    L += [salu("s_and_b32", mh, sJ, 1), salu("s_lshr_b32", nq, sJ, 1)]
    L += [salu("s_mul_i32", sT[2], sG, 1310720)]; srd(L, sO, S(88), S(89), sT[2], 0, 1310720)
    L += [salu("s_mul_i32", sT[2], sBr, 128 * 28672), salu("s_add_u32", sT[2], sT[2], WS_WOT)]; srd(L, sWT, S(88), S(89), sT[2], 0, 128 * 28672)
    L += [salu("s_lshl_b32", sT[2], sB, 1), salu("s_add_u32", sT[2], sT[2], mh), salu("s_mul_i32", sT[2], sT[2], 80 * 1792),
          salu("s_mul_i32", sT[3], sBr, 896), salu("s_add_u32", sT[2], sT[2], sT[3]), salu("s_mul_i32", sT[3], nq, 224), salu("s_add_u32", sT[2], sT[2], sT[3])]
    srd(L, sOut, S(84), S(85), sT[2], 0, 79 * 1792 + 224)
    sOo, sWo_ = S(40), S(41)
    L += [salu("s_mul_i32", sOo, sW, 16 * 10240), salu("s_mul_i32", sT[2], mh, 5120), salu("s_add_u32", sOo, sOo, sT[2]),
          salu("s_mul_i32", sWo_, sW, 16 * 28672), salu("s_mul_i32", sT[2], nq, 7168), salu("s_add_u32", sWo_, sWo_, sT[2])]
    v16, v16b = V(2), V(3)
    L += [valu("v_lshlrev_b32", v16, 4, vL), valu("v_add_u32", v16b, 4096, v16)]
    D = P.k2depth
    def fO(st, i): return V(16 + 48 * (st % D) + 4 * i, 4)
    def fW(st, i): return V(16 + 48 * (st % D) + 20 + 4 * i, 4)
    def acc(nt, qt): return A(4 * (nt * 5 + qt), 4)
    ks = list(range(16)) + list(range(64, 80))
    def loads(st):
        G = []
        k = ks[st]
        s1, s2 = S(44 + 2 * (st & 1)), S(45 + 2 * (st & 1))
        for i in range(5):
            g = [salu("s_add_u32", s1, sOo, k * 10240)] if i == 0 else []
            G.append(g + [bload(fO(st, i), v16 if i < 4 else v16b, sO, s1, (i & 3) * 1024, P.k2oflags)])
        for i in range(7):
            g = [salu("s_add_u32", s2, sWo_, k * 28672)] if i == 0 else []
            G.append(g + [bload(fW(st, i), v16 if i < 4 else v16b, sWT, s2, (i & 3) * 1024, P.k2wflags)])
        return G
    for st in range(D - 1):
        for g in loads(st): L += g
    RS = 464
    vWa, vRa, vOa = V(4), [V(5 + i) for i in range(5)], [V(10 + i) for i in range(5)]
    t0, t1, t2 = V(240), V(241), V(242)
    L += [valu("v_and_b32", t0, 15, vL), valu("v_mul_u32_u24", t0, RS, t0), valu("v_lshrrev_b32", t1, 4, vL), valu("v_lshl_add_u32", t0, t1, 4, t0),
          salu("s_mul_i32", sT[2], sW, 80 * RS), valu("v_add_u32", vWa, sT[2], t0), salu("s_mov_b32", sT[3], 4682)]
    for r in range(5):
        L += [valu("v_add_u32", t0, 256 * r, V(0)), valu("v_mul_u32_u24", t1, sT[3], t0), valu("v_lshrrev_b32", t1, 16, t1),
              valu("v_mul_u32_u24", t2, 14, t1), valu("v_sub_u32", t2, t0, t2),
              valu("v_mul_u32_u24", t0, 1792, t1), valu("v_lshl_add_u32", vOa[r], t2, 4, t0),
              valu("v_min_u32", t1, 79, t1), valu("v_mul_u32_u24", t0, RS, t1), valu("v_lshl_add_u32", vRa[r], t2, 5, t0)]
    sc = Sched()
    for st in range(32):
        p = sc.pos
        for nt in range(7):
            for qt in range(5):
                sc.m(mfma(False, acc(nt, qt), fW(st, nt), fO(st, qt), 0 if st == 0 else acc(nt, qt)), 8)
        if st + D - 1 < 32:
            for k, g in enumerate(loads(st + D - 1)):
                pos = p + (k * 33) // 12 - (1 if st == 0 else 0) * 0
                sc.f('ld', g, pos, pos)
    L += sc.run(['ld'])
    for nt in range(7):
        for qt in range(5):
            L.append(ds_write("ds_write_b128", vWa, acc(nt, qt), qt * 16 * RS + nt * 64, tag='pub'))
    L += [wait_ds('pub'), barrier()]
    vB2 = [V(243 + i) for i in range(5)]
    for r in range(5): L.append(valu("v_add_u32", vB2[r], 2 * 80 * RS, vRa[r]))
    def rd(r, w, h): return V(16 + 32 * r + 8 * w + 4 * h, 4)
    for r in range(5):
        for w in range(4):
            for h in range(2): L.append(ds_read("ds_read_b128", rd(r, w, h), vRa[r] if w < 2 else vB2[r], (w & 1) * 80 * RS + h * 16))
        if r >= 1: L += red(r - 1, rd, vOa, sOut)
    L += red(4, rd, vOa, sOut)
    L += [label("L_k2_end"), raw("s_endpgm")]
    return finalize(L, group=0)
def red(r, rd, vOa, sOut):
    L = []
    for h in range(2):
        for e in range(4):
            L += [valu("v_add_f32", rd(r, 0, h)[e], rd(r, 0, h)[e], rd(r, 1, h)[e]), valu("v_add_f32", rd(r, 2, h)[e], rd(r, 2, h)[e], rd(r, 3, h)[e])]
    for h in range(2):
        for e in range(4): L += [valu("v_add_f32", rd(r, 0, h)[e], rd(r, 0, h)[e], rd(r, 2, h)[e])]
    pk = rd(r, 1, 0)
    for h in range(2):
        for e in range(2): L.append(valu("v_cvt_pk_bf16_f32", pk[2 * h + e], rd(r, 0, h)[2 * e], rd(r, 0, h)[2 * e + 1]))
    L.append(bstore(pk, vOa[r], sOut, 0, 0))
    return L

def kd(name):
    s = f".amdhsa_kernel {name}\n"
    for d in ["next_free_vgpr 512", "next_free_sgpr 102", "accum_offset 256", "group_segment_fixed_size 0", "kernarg_size 104", "user_sgpr_count 2",
              "user_sgpr_kernarg_segment_ptr 1", "system_sgpr_workgroup_id_x 1", "float_denorm_mode_32 3"]:
        s += "  .amdhsa_" + d + "\n"
    return s + ".end_amdhsa_kernel\n"

def build(out, only=None):
    hdr = [l for l in open("cdna_kernels/" + NAME + ".s.ref").read().splitlines() if l.startswith(";") and "@launch" not in l and "Override" not in l and "grid=ceil" not in l]
    k1, k2 = NAME + "_kernel", "outproj_kernel"
    T = "\n".join(hdr) + "\n"
    if only != 'k2': T += f"; @launch kernel={k1} grid=(256,1,1) block=(256,1,1) lds=163840\n"
    if only != 'k1': T += f"; @launch kernel={k2} grid=(256,1,1) block=(256,1,1) lds=163840\n"
    T += '.amdgcn_target "amdgcn-amd-amdhsa--gfx950"\n.text\n'
    for name, g in ((k1, gen_k1), (k2, gen_k2)):
        T += f".globl {name}\n.p2align 8\n.type {name},@function\n{name}:\n" + "\n".join(("" if i.kind == 'label' else "    ") + i.text for i in g()) + "\n"
    T += '.section .rodata,"a"\n.p2align 6\n' + kd(k1) + ".p2align 6\n" + kd(k2)
    open(out, "w").write(T)

if __name__ == "__main__":
    out = sys.argv[1]
    only = None
    for a in sys.argv[2:]:
        k, v = a.split("=", 1)
        if k == 'only': only = v; continue
        setattr(P, k, eval(v) if k[-5:] != 'flags' else v.replace("+", " "))
    build(out, only)
```
